```python
import torch

def _softmax(x, axis=-1):
    return torch.softmax(x, dim=axis)
def _gelu(x):
    return torch.nn.functional.gelu(x, approximate="tanh")
def _silu(x):
    return torch.nn.functional.silu(x)
def _sigmoid(x):
    return torch.sigmoid(x)
def _layernorm(x, axis=-1, eps=1e-5):
    m = x.mean(dim=axis, keepdim=True)
    v = x.var(dim=axis, keepdim=True, unbiased=False)
    return (x - m) / torch.sqrt(v + eps)
def _scatter_add(tgt, idx, src, axis=0):
    return tgt.clone().index_add_(axis, idx, src)
def _segment_sum(src, seg, n):
    out = torch.zeros((n,) + src.shape[1:], dtype=src.dtype)
    return out.index_add_(0, seg, src)
def _pad(x, pw):
    flat = tuple(v for pair in reversed(pw) for v in pair)
    return torch.nn.functional.pad(x, flat)

kernel_name = 'interleave_layers__grouped_kv_mqa__glu_gated_geglu__prompt'

def setup_inputs():

    _w = (lambda a: (lambda t: t.to(torch.bfloat16) if t.is_floating_point() else t)(torch.as_tensor(a)))
    def _A_setup():
        B, S, D, H = 1, 2048, 640, 32
        Dh = D // H
        return {
            "x": _w((lambda *s: torch.randn(*s, dtype=torch.bfloat16) * 0.05)(B, S, D)),
            "wq": _w((lambda *s: torch.randn(*s, dtype=torch.bfloat16) * 0.05)(D, H * Dh)),
            "wk": _w((lambda *s: torch.randn(*s, dtype=torch.bfloat16) * 0.05)(D, Dh)),
            "wv": _w((lambda *s: torch.randn(*s, dtype=torch.bfloat16) * 0.05)(D, Dh)),
            "wo": _w((lambda *s: torch.randn(*s, dtype=torch.bfloat16) * 0.05)(H * Dh, D)),
        }
    _A_in = _A_setup()

    def _B_setup():
        B, S, Dm, Df = 1, 2048, 640, 1728
        return {
            "x": _w((lambda *s: torch.randn(*s, dtype=torch.bfloat16) * 0.05)(B, S, Dm)),
            "w_gate": _w((lambda *s: torch.randn(*s, dtype=torch.bfloat16) * 0.8)(Dm, Df) * (Dm ** -0.5)),
            "w_up": _w((lambda *s: torch.randn(*s, dtype=torch.bfloat16) * 0.8)(Dm, Df) * (Dm ** -0.5)),
            "w_down": _w((lambda *s: torch.randn(*s, dtype=torch.bfloat16) * 0.8)(Df, Dm) * (Df ** -0.5)),
        }
    _B_in = _B_setup()

    return {
        "A_x": _A_in["x"],
        "A_wq": _A_in["wq"],
        "A_wk": _A_in["wk"],
        "A_wv": _A_in["wv"],
        "A_wo": _A_in["wo"],
        "B_x": _B_in["x"],
        "B_w_gate": _B_in["w_gate"],
        "B_w_up": _B_in["w_up"],
        "B_w_down": _B_in["w_down"],
    }

def reference(A_x, A_wq, A_wk, A_wv, A_wo, B_x, B_w_gate, B_w_up, B_w_down):
    def _A_ref(x, wq, wk, wv, wo):
        B, S, D = x.shape
        H = 32
        Dh = D // H
        q = (lambda x, *d: x.permute(*d))((x @ wq).reshape(B, S, H, Dh), 0, 2, 1, 3)
        k = x @ wk
        v = x @ wv
        scores = torch.einsum("bhqd,bkd->bhqk", q, k) * (Dh ** -0.5)
        p = _softmax(scores, axis=-1)
        o = torch.einsum("bhqk,bkd->bhqd", p, v)
        return (lambda x, *d: x.permute(*d))(o, 0, 2, 1, 3).reshape(B, S, H * Dh) @ wo

    def _B_ref(x, w_gate, w_up, w_down):
        g = torch.einsum("bsd,df->bsf", x, w_gate)
        u = torch.einsum("bsd,df->bsf", x, w_up)
        h = _gelu(g) * u
        return torch.einsum("bsf,fd->bsd", h, w_down)

    x = A_x
    x = x + _A_ref(_layernorm(x, axis=-1), A_wq, A_wk, A_wv, A_wo)
    x = x + _B_ref(_layernorm(x, axis=-1), B_w_gate, B_w_up, B_w_down)
    x = x + _A_ref(_layernorm(x, axis=-1), A_wq, A_wk, A_wv, A_wo)
    x = x + _B_ref(_layernorm(x, axis=-1), B_w_gate, B_w_up, B_w_down)
    return x
```

```python
import re
import sys

VCC = (106, 107)
EXEC = (126, 127)
M0 = (124,)

TRANS = {"v_exp_f32", "v_log_f32", "v_rcp_f32", "v_rsq_f32", "v_sqrt_f32", "v_sin_f32",
         "v_cos_f32", "v_rcp_iflag_f32", "v_exp_f16", "v_log_f16", "v_rcp_f16", "v_rsq_f16",
         "v_sqrt_f16"}

_REG_RE = re.compile(r"^-?\|?(?:abs\()?([vsa])(\d+)\)?\|?$")
_RANGE_RE = re.compile(r"^-?\|?(?:abs\()?([vsa])\[(\d+):(\d+)\]\)?\|?$")


def parse_reg(tok):
    tok = tok.strip()
    m = _REG_RE.match(tok)
    if m:
        n = int(m.group(2))
        return (m.group(1), n, n)
    m = _RANGE_RE.match(tok)
    if m:
        return (m.group(1), int(m.group(2)), int(m.group(3)))
    if tok in ("vcc",):
        return ("s", 106, 107)
    if tok == "vcc_lo":
        return ("s", 106, 106)
    if tok == "vcc_hi":
        return ("s", 107, 107)
    if tok == "exec":
        return ("s", 126, 127)
    if tok == "exec_lo":
        return ("s", 126, 126)
    if tok == "exec_hi":
        return ("s", 127, 127)
    if tok == "m0":
        return ("s", 124, 124)
    return None


def split_ops(s):
    out, depth, cur = [], 0, ""
    for ch in s:
        if ch in "[(":
            depth += 1
        elif ch in "])":
            depth -= 1
        if ch == "," and depth == 0:
            out.append(cur.strip())
            cur = ""
        else:
            cur += ch
    if cur.strip():
        out.append(cur.strip())
    return out


class Ins:
    __slots__ = ("text", "kind", "mn", "ops", "vdef", "vuse", "sdef", "suse", "adef", "ause",
                 "passes", "trans", "dpp", "permlane", "readlane", "ldsdma", "widestore",
                 "wait", "label", "target", "term", "mfma_c", "mfma_d", "is_store", "is_load",
                 "storedata", "comment_only", "mods")

    def __init__(self, text):
        self.text = text
        self.kind = "other"
        self.mn = ""
        self.ops = []
        self.vdef = set(); self.vuse = set(); self.sdef = set(); self.suse = set()
        self.adef = set(); self.ause = set()
        self.passes = 0
        self.trans = self.dpp = self.permlane = self.readlane = False
        self.ldsdma = self.widestore = False
        self.wait = 0
        self.label = None
        self.target = None
        self.term = False
        self.mfma_c = None
        self.mfma_d = None
        self.is_store = self.is_load = False
        self.storedata = set()
        self.comment_only = False
        self.mods = ""


def _add(ins, tok, which):
    r = parse_reg(tok)
    if r is None:
        return False
    cls, lo, hi = r
    rng = range(lo, hi + 1)
    if cls == "v":
        (ins.vdef if which == "d" else ins.vuse).update(rng)
    elif cls == "s":
        (ins.sdef if which == "d" else ins.suse).update(rng)
    else:
        (ins.adef if which == "d" else ins.ause).update(rng)
    return True


def parse_ins(line):
    raw = line
    code = line.split(";")[0]
    code = code.split("//")[0].strip()
    ins = Ins(raw)
    if not code:
        ins.comment_only = True
        return ins
    if code.endswith(":") and " " not in code:
        ins.kind = "label"
        ins.label = code[:-1]
        return ins
    if code.startswith("."):
        ins.kind = "directive"
        return ins
    parts = code.split(None, 1)
    mn = parts[0]
    rest = parts[1] if len(parts) > 1 else ""
    ins.mn = mn
    ops = split_ops(rest)
    mods = []
    if ops:
        last = ops[-1].split()
        if len(last) > 1:
            ops[-1] = last[0]
            mods = last[1:]
        elif len(last) == 1 and parse_reg(last[0]) is None and not re.match(r"^[-+]?(0x[0-9a-fA-F]+|\d+(\.\d+)?|off|null|[\w.$]+)$", last[0]):
            mods = last
            ops = ops[:-1]
    ins.ops = ops
    ins.mods = " ".join(mods)
    ins.wait = 1

    if mn.startswith("v_mfma"):
        ins.kind = "mfma"
        d, a, b, c = ops[:4]
        _add(ins, d, "d"); _add(ins, a, "u"); _add(ins, b, "u"); _add(ins, c, "u")
        ins.mfma_d = parse_reg(d)
        ins.mfma_c = parse_reg(c)
        if "32x32x16" in mn:
            ins.passes = 8
        elif "16x16x32" in mn:
            ins.passes = 4
        else:
            raise ValueError("unknown mfma " + mn)
        return ins
    if mn.startswith("v_"):
        ins.kind = "valu"
        base = mn.replace("_e32", "").replace("_e64", "").replace("_dpp", "").replace("_sdwa", "")
        ins.trans = base in TRANS
        ins.dpp = mn.endswith("_dpp") or "row_" in ins.mods or "quad_perm" in ins.mods
        ins.suse.update(EXEC)
        if base.startswith("v_cmpx"):
            _add(ins, ops[0], "d"); ins.sdef.update(EXEC)
            for o in ops[1:]: _add(ins, o, "u")
        elif base.startswith("v_cmp"):
            _add(ins, ops[0], "d")
            for o in ops[1:]: _add(ins, o, "u")
        elif base in ("v_readfirstlane_b32", "v_readlane_b32"):
            ins.readlane = True
            _add(ins, ops[0], "d")
            for o in ops[1:]: _add(ins, o, "u")
        elif base in ("v_add_co_u32", "v_sub_co_u32", "v_subrev_co_u32", "v_div_scale_f32",
                      "v_mad_u64_u32"):
            _add(ins, ops[0], "d"); _add(ins, ops[1], "d")
            for o in ops[2:]: _add(ins, o, "u")
        elif base in ("v_addc_co_u32", "v_subb_co_u32"):
            _add(ins, ops[0], "d"); _add(ins, ops[1], "d")
            for o in ops[2:]: _add(ins, o, "u")
        elif base in ("v_permlane32_swap_b32", "v_permlane16_swap_b32", "v_swap_b32"):
            ins.permlane = base.startswith("v_permlane")
            for o in ops[:2]:
                _add(ins, o, "d"); _add(ins, o, "u")
        elif base in ("v_fmac_f32", "v_dot2c_f32_bf16", "v_pk_fmac_f16", "v_fmac_f16", "v_writelane_b32"):
            _add(ins, ops[0], "d"); _add(ins, ops[0], "u")
            for o in ops[1:]: _add(ins, o, "u")
        elif base == "v_nop":
            pass
        else:
            _add(ins, ops[0], "d")
            for o in ops[1:]: _add(ins, o, "u")
            if base == "v_cndmask_b32" and len(ops) == 3:
                ins.suse.update(VCC)
            if base in ("v_div_fmas_f32",):
                ins.suse.update(VCC)
        return ins
    if mn.startswith("buffer_") or mn.startswith("global_") or mn.startswith("flat_"):
        ins.kind = "vmem"
        ins.suse.update(EXEC)
        is_lds = ("lds" in ins.mods.split()) or ("_lds_" in mn)
        if "load" in mn:
            ins.is_load = True
            if is_lds:
                ins.ldsdma = True
                ins.suse.update(M0)
                for o in ops: _add(ins, o, "u")
            else:
                _add(ins, ops[0], "d")
                for o in ops[1:]: _add(ins, o, "u")
        elif "store" in mn:
            ins.is_store = True
            for o in ops: _add(ins, o, "u")
            dtok = ops[1] if mn.startswith("global_") or mn.startswith("flat_") else ops[0]
            r = parse_reg(dtok)
            if r: ins.storedata = set(range(r[1], r[2] + 1)) if r[0] == "v" else set()
            ins.widestore = ("dwordx3" in mn or "dwordx4" in mn)
        elif "atomic" in mn:
            ins.is_store = True
            for o in ops: _add(ins, o, "u")
            if "sc0" in ins.mods.split():
                _add(ins, ops[0], "d")
        else:
            raise ValueError("unknown vmem " + mn)
        return ins
    if mn.startswith("ds_"):
        ins.kind = "ds"
        ins.suse.update(EXEC)
        if mn.startswith("ds_read") or mn.startswith("ds_bpermute") or mn.startswith("ds_permute") or mn.startswith("ds_swizzle"):
            ins.is_load = True
            _add(ins, ops[0], "d")
            for o in ops[1:]: _add(ins, o, "u")
        else:
            for o in ops: _add(ins, o, "u")
        return ins
    if mn.startswith("s_load") or mn.startswith("s_buffer_load"):
        ins.kind = "smem"
        _add(ins, ops[0], "d")
        for o in ops[1:]: _add(ins, o, "u")
        return ins
    if mn.startswith("s_"):
        ins.kind = "salu"
        if mn == "s_nop":
            ins.wait = int(ops[0], 0) + 1
        elif mn in ("s_waitcnt", "s_barrier", "s_setprio", "s_sleep"):
            pass
        elif mn == "s_endpgm":
            ins.term = True
        elif mn == "s_branch":
            ins.target = ops[0]; ins.term = True
        elif mn.startswith("s_cbranch"):
            ins.target = ops[0]
            if "vcc" in mn: ins.suse.update(VCC)
            if "exec" in mn: ins.suse.update(EXEC)
        elif mn.startswith("s_cmp") or mn.startswith("s_bitcmp"):
            for o in ops: _add(ins, o, "u")
        else:
            _add(ins, ops[0], "d")
            for o in ops[1:]: _add(ins, o, "u")
            if "saveexec" in mn:
                ins.sdef.update(EXEC); ins.suse.update(EXEC)
        return ins
    raise ValueError("cannot parse: " + line)


class Program:
    def __init__(self):
        self.lines = []

    def __call__(self, s=""):
        for l in s.split("\n"):
            self.lines.append(l)

    def comment(self, s):
        self.lines.append("    ; " + s)


def _cfg(inss):
    labels = {}
    for i, ins in enumerate(inss):
        if ins.kind == "label":
            labels[ins.label] = i
    preds = [[] for _ in inss]
    for i, ins in enumerate(inss):
        if i + 1 < len(inss) and not ins.term:
            preds[i + 1].append(i)
        if ins.target is not None and ins.target in labels:
            preds[labels[ins.target]].append(i)
    return preds


def _min_dist(inss, preds, start, pred_fn, limit):
    best = limit
    stack = [(p, 0) for p in preds[start]]
    seen = {}
    while stack:
        i, cnt = stack.pop()
        if cnt >= best:
            continue
        if i in seen and seen[i] <= cnt:
            continue
        seen[i] = cnt
        ins = inss[i]
        if ins.kind not in ("label", "directive") and not ins.comment_only and pred_fn(ins):
            best = min(best, cnt)
            continue
        w = ins.wait if ins.kind not in ("label", "directive") and not ins.comment_only else 0
        for p in preds[i]:
            stack.append((p, cnt + w))
    return best


def mfma_ws(passes):
    return {2: 5, 4: 8, 8: 12, 16: 20}[passes]


def insert_hazard_nops(lines, verbose=False):
    changed = True
    total = 0
    while changed:
        changed = False
        inss = [parse_ins(l) for l in lines]
        preds = _cfg(inss)
        out = []
        for i, c in enumerate(inss):
            need = 0
            if c.kind in ("label", "directive") or c.comment_only:
                out.append(lines[i])
                continue
            reqs = []
            vr = c.vuse | c.vdef
            if c.kind in ("valu", "vmem", "ds"):
                regs = (c.vuse | c.vdef)
                if regs:
                    for ps in (4, 8):
                        reqs.append((lambda p, ps=ps, regs=regs: p.kind == "mfma" and p.passes == ps and (p.vdef & regs), mfma_ws(ps)))
            if c.kind == "valu" and c.vdef:
                for ps, w in ((4, 3), (8, 7)):
                    reqs.append((lambda p, ps=ps: p.kind == "mfma" and p.passes == ps and p.mfma_c and p.mfma_c[0] == "v" and (set(range(p.mfma_c[1], p.mfma_c[2] + 1)) & c.vdef), w))
            if c.kind == "mfma":
                ab = set()
                for o in c.ops[1:3]:
                    r = parse_reg(o)
                    if r and r[0] == "v": ab.update(range(r[1], r[2] + 1))
                for ps in (4, 8):
                    reqs.append((lambda p, ps=ps, ab=ab: p.kind == "mfma" and p.passes == ps and (p.vdef & ab), mfma_ws(ps)))
                if c.mfma_c and c.mfma_c[0] == "v":
                    cset = set(range(c.mfma_c[1], c.mfma_c[2] + 1))
                    for ps, w in ((4, 6), (8, 10)):
                        reqs.append((lambda p, ps=ps, cset=cset: p.kind == "mfma" and p.passes == ps and (p.vdef & cset) and not (p.mfma_d == c.mfma_c and p.passes == c.passes), w))
                reqs.append((lambda p: p.kind == "valu" and (p.vdef & c.vuse), 2))
            if c.kind == "vmem":
                reqs.append((lambda p: p.kind == "valu" and (p.sdef & c.suse - set(EXEC)), 5))
            if c.kind == "valu":
                su = c.suse - set(EXEC)
                if su:
                    w = 4 if c.readlane or c.mn.startswith("v_writelane") else 2
                    reqs.append((lambda p, su=su: p.kind == "valu" and (p.sdef & su), w))
                if c.readlane:
                    reqs.append((lambda p: p.kind == "valu" and (p.vdef & c.vuse), 1))
                if c.permlane or c.dpp:
                    reqs.append((lambda p: p.kind == "valu" and (p.vdef & c.vuse), 2))
                if not c.trans:
                    reqs.append((lambda p: p.kind == "valu" and p.trans and (p.vdef & c.vuse), 1))
                if c.mn.startswith("v_div_fmas"):
                    reqs.append((lambda p: p.kind == "valu" and (p.sdef & set(VCC)), 4))
            if c.kind in ("valu", "mfma", "vmem", "ds"):
                regs2 = c.vuse | c.vdef
                reqs.append((lambda p, regs2=regs2: p.kind == "valu" and p.mn.startswith("v_dot") and (p.vdef & regs2) and not (p.mn == c.mn and not (p.vdef & (c.vuse - c.vdef))), 3))
            if c.ldsdma:
                reqs.append((lambda p: p.kind == "salu" and (p.sdef & set(M0)), 1))
            if c.vdef:
                w = 2 if c.kind == "valu" else 1
                reqs.append((lambda p: p.kind == "vmem" and p.widestore and (p.storedata & c.vdef), w))
            for fn, w in reqs:
                d = _min_dist(inss, preds, i, fn, w)
                if d < w:
                    need = max(need, w - d)
            if need:
                if verbose:
                    sys.stderr.write("hazard: +%d before line %d: %s\n" % (need, i, lines[i].strip()))
                n = need
                while n > 0:
                    k = min(n, 16)
                    out.append("    s_nop %d" % (k - 1))
                    n -= k
                total += 1
                changed = True
                out.append(lines[i])
                out.extend(lines[i + 1:])
                break
            out.append(lines[i])
        lines = out
    return lines, total


def check_waitcnt(lines, name="", max_visits=3):
    inss = [parse_ins(l) for l in lines]
    labels = {ins.label: i for i, ins in enumerate(inss) if ins.kind == "label"}
    errors = []
    seen = set()
    stack = [(0, (), (), ())]
    steps = 0
    while stack:
        i, vm, lg, visits = stack.pop()
        while i < len(inss):
            steps += 1
            if steps > 4000000:
                errors.append(name + ": waitcnt check gave up (too many paths)")
                return errors
            ins = inss[i]
            key = (i, vm, lg)
            if ins.kind == "label":
                if key in seen:
                    break
                seen.add(key)
            if ins.kind in ("label", "directive") or ins.comment_only:
                i += 1
                continue
            touched_v = ins.vuse | ins.vdef
            touched_s = ins.suse | ins.sdef
            for (k, vs, ss) in vm:
                if vs & touched_v:
                    errors.append("%s: line %d '%s' touches v%s with outstanding vmem load" % (name, i, ins.text.strip(), sorted(vs & touched_v)[:4]))
            for (k, vs, ss) in lg:
                if vs & touched_v or ss & touched_s:
                    errors.append("%s: line %d '%s' touches reg with outstanding lgkm op (v%s s%s)" % (name, i, ins.text.strip(), sorted(vs & touched_v)[:4], sorted(ss & touched_s)[:4]))
            if ins.mn == "s_waitcnt":
                m = re.search(r"vmcnt\((\d+)\)", ins.text)
                if m:
                    n = int(m.group(1))
                    if len(vm) > n:
                        vm = vm[len(vm) - n:] if n else ()
                m = re.search(r"lgkmcnt\((\d+)\)", ins.text)
                if m:
                    n = int(m.group(1))
                    if any(k == "smem" for k, _, _ in lg):
                        if n == 0:
                            lg = ()
                    elif len(lg) > n:
                        lg = lg[len(lg) - n:] if n else ()
            elif ins.kind == "vmem":
                if ins.is_load and not ins.ldsdma:
                    vm = vm + (("ld", frozenset(ins.vdef), frozenset()),)
                else:
                    vm = vm + (("st", frozenset(), frozenset()),)
                vm = vm[-63:]
            elif ins.kind == "ds":
                if ins.is_load:
                    lg = lg + (("ds", frozenset(ins.vdef), frozenset()),)
                else:
                    lg = lg + (("dsw", frozenset(), frozenset()),)
            elif ins.kind == "smem":
                lg = lg + (("smem", frozenset(), frozenset(ins.sdef)),)
            if ins.target is not None and ins.target in labels:
                t = labels[ins.target]
                if ins.term:
                    i = t
                    continue
                stack.append((t, vm, lg, visits))
            if ins.term:
                break
            i += 1
    out = []
    for e in errors:
        if e not in out:
            out.append(e)
    return out


def max_regs(lines):
    mv = ms = -1
    for l in lines:
        ins = parse_ins(l)
        for s in (ins.vdef, ins.vuse):
            if s: mv = max(mv, max(s))
        for s in (ins.sdef, ins.suse):
            t = [x for x in s if x < 102]
            if t: ms = max(ms, max(t))
    return mv, ms


def vr(base, n=1):
    return "v%d" % base if n == 1 else "v[%d:%d]" % (base, base + n - 1)


def sr(base, n=1):
    return "s%d" % base if n == 1 else "s[%d:%d]" % (base, base + n - 1)


class Alloc:
    def __init__(self, start=0, limit=256):
        self.next = start
        self.limit = limit

    def __call__(self, n=1, align=None):
        if align is None:
            align = 1 if n == 1 else (2 if n == 2 else 4)
        b = (self.next + align - 1) // align * align
        self.next = b + n
        assert self.next <= self.limit, "out of registers"
        return b
```

```python
import sys
from asmlib import insert_hazard_nops, check_waitcnt, max_regs

S, D, H, DH, DF = 2048, 640, 32, 20, 1728

ARG = dict(x=0, wq=8, wk=16, wv=24, wo=32, bx=40, wg=48, wu=56, wd=64, out=72, dbg=80, ws=88)
ARG_BYTES = dict(x=S * D * 2, wq=D * D * 2, wk=D * DH * 2, wv=D * DH * 2, wo=D * D * 2,
                 bx=S * D * 2, wg=D * DF * 2, wu=D * DF * 2, wd=DF * D * 2, out=S * D * 2)

XB = S * D * 2
WS = {}
_o = 0


def _ws(name, nbytes):
    global _o
    WS[name] = (_o, nbytes)
    _o += (nbytes + 4095) // 4096 * 4096


_ws("xn", XB)
_ws("q", XB)
_ws("kext", S * 64)
_ws("vt", 64 * 2048)
_ws("wkv", D * 256)
_ws("o", XB)
_ws("x1", XB)
_ws("x2", XB)
_ws("x3", XB)
_ws("h", S * DF * 2)
WS_TOTAL = _o


def buf(name):
    if name in ARG_BYTES:
        return ("arg", name, 0, ARG_BYTES[name])
    off, nb = WS[name]
    return ("ws", name, off, nb)


class Kernel:
    def __init__(self, name, grid, block, lds, lines, nsgpr=None):
        self.name, self.grid, self.block, self.lds, self.lines = name, grid, block, lds, lines
        self.nsgpr = nsgpr


def emit_srd(p, sb, sptr_lo, off, nbytes, tmp_ok=True):
    if off:
        p("    s_add_u32 s%d, s%d, 0x%x" % (sb, sptr_lo, off))
        p("    s_addc_u32 s%d, s%d, 0" % (sb + 1, sptr_lo + 1))
    else:
        p("    s_mov_b32 s%d, s%d" % (sb, sptr_lo))
        p("    s_mov_b32 s%d, s%d" % (sb + 1, sptr_lo + 1))
    p("    s_mov_b32 s%d, 0x%x" % (sb + 2, nbytes))
    p("    s_mov_b32 s%d, 0x20000" % (sb + 3))


def finish_kernel(k, verbose=False):
    lines, n = insert_hazard_nops(k.lines, verbose=verbose)
    errs = check_waitcnt(lines, k.name)
    for e in errs:
        sys.stderr.write("WAITCNT ERROR: " + e + "\n")
    if errs:
        raise SystemExit("waitcnt errors in " + k.name)
    mv, ms = max_regs(lines)
    return lines, mv + 1, ms + 1, n


def build_file(kernels, launches, header_comment_lines, verbose=False):
    out = []
    out += header_comment_lines
    for (name, grid, block, lds) in launches:
        out.append("; @launch kernel=%s grid=(%d,%d,%d) block=(%d,%d,%d) lds=%d" % (
            name, grid[0], grid[1], grid[2], block[0], block[1], block[2], lds))
    out.append('.amdgcn_target "amdgcn-amd-amdhsa--gfx950"')
    out.append(".text")
    descs = []
    stats = []
    for k in kernels:
        lines, nv, ns, nn = finish_kernel(k, verbose)
        out.append(".globl %s" % k.name)
        out.append(".p2align 8")
        out.append(".type %s,@function" % k.name)
        out.append("%s:" % k.name)
        out += lines
        nvr = max(nv, 8)
        acc = (nvr + 3) // 4 * 4
        descs.append("\n".join([
            ".amdhsa_kernel %s" % k.name,
            "  .amdhsa_next_free_vgpr %d" % nvr,
            "  .amdhsa_next_free_sgpr %d" % max(ns, 16),
            "  .amdhsa_accum_offset %d" % acc,
            "  .amdhsa_group_segment_fixed_size 0",
            "  .amdhsa_kernarg_size 96",
            "  .amdhsa_user_sgpr_count 2",
            "  .amdhsa_user_sgpr_kernarg_segment_ptr 1",
            "  .amdhsa_system_sgpr_workgroup_id_x 1",
            "  .amdhsa_float_denorm_mode_32 3",
            "  .amdhsa_float_denorm_mode_16_64 3",
            ".end_amdhsa_kernel"]))
        stats.append((k.name, nv, ns, nn, len(lines)))
    out.append('.section .rodata,"a"')
    for d in descs:
        out.append(".p2align 6")
        out.append(d)
    return "\n".join(out) + "\n", stats
```

```python
from asmlib import Program, Alloc, vr, sr
from common import ARG, WS, buf, emit_srd, Kernel

NT = 2
KS = 4
NKT = 2048 // 32 // KS


def gen_attn(name):
    p = Program()
    NWG = 65536 // (32 * NT)
    oQ, nQ = WS["q"]; oK, nK = WS["kext"]; oV, nV = WS["vt"]; oO, nO = WS["o"]
    p("    s_cmp_ge_u32 s2, %d" % NWG)
    p("    s_cbranch_scc1 L_%s_end" % name)
    p("    s_load_dwordx2 s[6:7], s[0:1], %d" % ARG["ws"])
    v = Alloc(1)
    vlane = v(); vL31 = v(); vH = v(); vt0 = v(); vt1 = v(); vt2 = v()
    p("    v_and_b32 %s, 63, v0" % vr(vlane))
    p("    v_lshrrev_b32 %s, 6, v0" % vr(vt0))
    p("    v_and_b32 %s, 31, v0" % vr(vL31))
    p("    v_readfirstlane_b32 s39, %s" % vr(vt0))
    p("    v_lshrrev_b32 %s, 5, %s" % (vr(vH), vr(vlane)))
    p("    s_waitcnt lgkmcnt(0)")
    emit_srd(p, 8, 6, oQ, nQ)
    emit_srd(p, 12, 6, oK, nK)
    emit_srd(p, 16, 6, oV, nV)
    emit_srd(p, 20, 6, oO, nO)

    Qa = [v(4, 4) for _ in range(NT)]
    Qb = [v(4, 4) for _ in range(NT)]
    Sr = [v(16, 4) for _ in range(NT)]
    Or = [v(16, 4) for _ in range(NT)]
    Kf = v(8, 4)
    Vf = v(8, 4)
    vK = v(); vV = v()
    vM = [v() for _ in range(NT)]
    vThr = [v() for _ in range(NT)]
    vMask = v()
    tm = v(); tA = v(); tB = v(); tC = v()

    p("    s_lshl_b32 s3, s2, %d" % (5 + (NT - 1)))
    p("    v_add_u32 %s, s3, %s" % (vr(vt0), vr(vL31)))
    for t in range(NT):
        p("    v_add_u32 %s, %d, %s" % (vr(vt1), 32 * t, vr(vt0)))
        p("    v_mul_u32_u24 %s, 40, %s" % (vr(vt1), vr(vt1)))
        p("    v_lshl_add_u32 %s, %s, 4, %s" % (vr(vt2), vr(vH), vr(vt1)))
        p("    buffer_load_dwordx4 %s, %s, s[8:11], 0 offen" % (vr(Qa[t], 4), vr(vt2)))
        p("    v_lshl_add_u32 %s, %s, 28, %s" % (vr(vt2), vr(vH), vr(vt1)))
        p("    buffer_load_dwordx2 %s, %s, s[8:11], 0 offen offset:32" % (vr(Qb[t], 2), vr(vt2)))
        p("    v_mov_b32 %s, 0" % vr(Qb[t] + 2))
        p("    v_mov_b32 %s, 0" % vr(Qb[t] + 3))
    p("    v_lshlrev_b32 %s, 6, %s" % (vr(vK), vr(vL31)))
    p("    v_lshl_add_u32 %s, %s, 4, %s" % (vr(vK), vr(vH), vr(vK)))
    p("    v_mov_b32 %s, %s" % (vr(vV), vr(vK)))
    p("    s_lshl_b32 s30, s39, %d" % (11 + 4))
    p("    s_mov_b32 s31, s30")
    p("    buffer_load_dwordx4 %s, %s, s[12:15], s30 offen" % (vr(Kf, 4), vr(vK)))
    p("    buffer_load_dwordx4 %s, %s, s[12:15], s30 offen offset:32" % (vr(Kf + 4, 4), vr(vK)))
    p("    buffer_load_dwordx4 %s, %s, s[16:19], s31 offen" % (vr(Vf, 4), vr(vV)))
    p("    buffer_load_dwordx4 %s, %s, s[16:19], s31 offen offset:32" % (vr(Vf + 4, 4), vr(vV)))
    for t in range(NT):
        for r in range(16):
            p("    v_mov_b32 %s, 0" % vr(Or[t] + r))
        p("    v_mov_b32 %s, 0" % vr(vM[t]))
        p("    v_mov_b32 %s, 0xff7fffff" % vr(vThr[t]))
    p("    v_subrev_u32 %s, 1, %s" % (vr(vMask), vr(vH)))
    p("    v_and_b32 %s, 0xffff, %s" % (vr(vMask), vr(vMask)))
    p("    s_mov_b32 s32, 0")
    p("    s_waitcnt vmcnt(4)")
    p("L_%s_loop:" % name)
    p("    s_waitcnt vmcnt(2)")
    for t in range(NT):
        p("    v_mfma_f32_32x32x16_bf16 %s, %s, %s, 0" % (vr(Sr[t], 16), vr(Kf, 4), vr(Qa[t], 4)))
        p("    v_mfma_f32_32x32x16_bf16 %s, %s, %s, %s" % (vr(Sr[t], 16), vr(Kf + 4, 4), vr(Qb[t], 4), vr(Sr[t], 16)))
    p("    s_add_u32 s30, s30, 0x800")
    p("    buffer_load_dwordx4 %s, %s, s[12:15], s30 offen" % (vr(Kf, 4), vr(vK)))
    p("    buffer_load_dwordx4 %s, %s, s[12:15], s30 offen offset:32" % (vr(Kf + 4, 4), vr(vK)))
    for t in range(NT):
        s = Sr[t]
        p("    v_max3_f32 %s, %s, %s, %s" % (vr(tm), vr(s), vr(s + 1), vr(s + 2)))
        for i in range(3, 15, 2):
            p("    v_max3_f32 %s, %s, %s, %s" % (vr(tm), vr(tm), vr(s + i), vr(s + i + 1)))
        p("    v_max_f32 %s, %s, %s" % (vr(tm), vr(tm), vr(s + 15)))
        p("    v_cmp_gt_f32 vcc, %s, %s" % (vr(tm), vr(vThr[t])))
        p("    s_cbranch_vccnz L_%s_rare%d" % (name, t))
        p("L_%s_back%d:" % (name, t))
        for i in range(16):
            p("    v_exp_f32 %s, %s" % (vr(s + i), vr(s + i)))
        for i in range(8):
            p("    v_cvt_pk_bf16_f32 %s, %s, %s" % (vr(s + i), vr(s + 2 * i), vr(s + 2 * i + 1)))
        if t == 0:
            p("    s_waitcnt vmcnt(2)")
        p("    v_mfma_f32_32x32x16_bf16 %s, %s, %s, %s" % (vr(Or[t], 16), vr(Vf, 4), vr(s, 4), vr(Or[t], 16)))
        p("    v_mfma_f32_32x32x16_bf16 %s, %s, %s, %s" % (vr(Or[t], 16), vr(Vf + 4, 4), vr(s + 4, 4), vr(Or[t], 16)))
    p("    s_add_u32 s31, s31, 0x800")
    p("    buffer_load_dwordx4 %s, %s, s[16:19], s31 offen" % (vr(Vf, 4), vr(vV)))
    p("    buffer_load_dwordx4 %s, %s, s[16:19], s31 offen offset:32" % (vr(Vf + 4, 4), vr(vV)))
    p("    s_add_u32 s32, s32, 1")
    p("    s_cmp_lt_u32 s32, %d" % NKT)
    p("    s_cbranch_scc1 L_%s_loop" % name)

    p("    s_waitcnt vmcnt(0)")
    vLa = vK
    p("    v_lshlrev_b32 %s, 2, %s" % (vr(vLa), vr(vlane)))
    p("    s_mul_i32 s3, s39, %d" % (NT * 13 * 256))
    p("    v_add_u32 %s, s3, %s" % (vr(vV), vr(vLa)))
    for t in range(NT):
        for r in range(12):
            p("    ds_write_b32 %s, %s offset:%d" % (vr(vV), vr(Or[t] + r), (t * 13 + r) * 256))
        p("    ds_write_b32 %s, %s offset:%d" % (vr(vV), vr(vM[t]), (t * 13 + 12) * 256))
    p("    s_waitcnt lgkmcnt(0)")
    p("    s_barrier")
    p("    s_cmp_ge_u32 s39, %d" % NT)
    p("    s_cbranch_scc1 L_%s_end" % name)
    p("    s_mul_i32 s3, s39, %d" % (13 * 256))
    p("    v_add_u32 %s, s3, %s" % (vr(vLa), vr(vLa)))
    Ow = Sr[0]
    Ms = Sr[1]
    for w in range(KS):
        p("    ds_read_b32 %s, %s offset:%d" % (vr(Ms + w), vr(vLa), (w * NT * 13 + 12) * 256))
    p("    s_waitcnt lgkmcnt(0)")
    p("    v_max3_f32 %s, %s, %s, %s" % (vr(tm), vr(Ms), vr(Ms + 1), vr(Ms + 2)))
    p("    v_max_f32 %s, %s, %s" % (vr(tm), vr(tm), vr(Ms + 3)))
    for w in range(KS):
        p("    v_sub_f32 %s, %s, %s" % (vr(Ms + 4 + w), vr(Ms + w), vr(tm)))
        p("    v_exp_f32 %s, %s" % (vr(Ms + 4 + w), vr(Ms + 4 + w)))
    Osum = Or[0]
    for w in range(KS):
        for r in range(12):
            p("    ds_read_b32 %s, %s offset:%d" % (vr(Ow + r), vr(vLa), (w * NT * 13 + r) * 256))
        p("    s_waitcnt lgkmcnt(0)")
        for r in range(12):
            if w == 0:
                p("    v_mul_f32 %s, %s, %s" % (vr(Osum + r), vr(Ow + r), vr(Ms + 4)))
            else:
                p("    v_fmac_f32 %s, %s, %s" % (vr(Osum + r), vr(Ow + r), vr(Ms + 4 + w)))
    p("    v_mov_b32 %s, %s" % (vr(tA), vr(Osum + 8)))
    p("    v_mov_b32 %s, %s" % (vr(tB), vr(Osum + 8)))
    p("    v_permlane32_swap_b32 %s, %s" % (vr(tA), vr(tB)))
    p("    v_rcp_f32 %s, %s" % (vr(tB), vr(tB)))
    for r in range(12):
        p("    v_mul_f32 %s, %s, %s" % (vr(Osum + r), vr(Osum + r), vr(tB)))
    for i in range(3):
        p("    v_cvt_pk_bf16_f32 %s, %s, %s" % (vr(Osum + 4 * i), vr(Osum + 4 * i), vr(Osum + 4 * i + 1)))
        p("    v_cvt_pk_bf16_f32 %s, %s, %s" % (vr(Osum + 4 * i + 1), vr(Osum + 4 * i + 2), vr(Osum + 4 * i + 3)))
    p("    s_lshl_b32 s3, s2, %d" % (5 + (NT - 1)))
    p("    s_lshl_b32 s33, s39, 5")
    p("    s_add_u32 s3, s3, s33")
    p("    v_add_u32 %s, s3, %s" % (vr(vt0), vr(vL31)))
    p("    v_mul_u32_u24 %s, 40, %s" % (vr(vt0), vr(vt0)))
    p("    v_lshl_add_u32 %s, %s, 3, %s" % (vr(vt1), vr(vH), vr(vt0)))
    p("    v_lshl_add_u32 %s, %s, 28, %s" % (vr(vt2), vr(vH), vr(vt0)))
    p("    buffer_store_dwordx2 %s, %s, s[20:23], 0 offen" % (vr(Osum, 2), vr(vt1)))
    p("    buffer_store_dwordx2 %s, %s, s[20:23], 0 offen offset:16" % (vr(Osum + 4, 2), vr(vt1)))
    p("    buffer_store_dwordx2 %s, %s, s[20:23], 0 offen offset:32" % (vr(Osum + 8, 2), vr(vt2)))
    p("L_%s_end:" % name)
    p("    s_endpgm")

    for t in range(NT):
        s = Sr[t]
        p("L_%s_rare%d:" % (name, t))
        p("    v_mov_b32 %s, %s" % (vr(tA), vr(tm)))
        p("    v_mov_b32 %s, %s" % (vr(tB), vr(tm)))
        p("    v_permlane32_swap_b32 %s, %s" % (vr(tA), vr(tB)))
        p("    v_max_f32 %s, %s, %s" % (vr(tm), vr(tA), vr(tB)))
        p("    v_cmp_gt_f32 vcc, %s, %s" % (vr(tm), vr(vThr[t])))
        p("    v_cndmask_b32 %s, 0, %s, vcc" % (vr(tm), vr(tm)))
        p("    v_add_f32 %s, %s, %s" % (vr(tA), vr(vM[t]), vr(tm)))
        p("    v_and_b32 %s, 0xffff0000, %s" % (vr(tA), vr(tA)))
        p("    v_sub_f32 %s, %s, %s" % (vr(tB), vr(tA), vr(vM[t])))
        for i in range(16):
            p("    v_sub_f32 %s, %s, %s" % (vr(s + i), vr(s + i), vr(tB)))
        p("    v_max_f32 %s, 0, %s" % (vr(tB), vr(tB)))
        p("    v_sub_f32 %s, 0, %s" % (vr(tB), vr(tB)))
        p("    v_exp_f32 %s, %s" % (vr(tB), vr(tB)))
        p("    v_mov_b32 %s, %s" % (vr(vM[t]), vr(tA)))
        p("    v_xor_b32 %s, 0x80000000, %s" % (vr(tA), vr(tA)))
        p("    v_lshrrev_b32 %s, 16, %s" % (vr(tA), vr(tA)))
        p("    v_and_b32 %s, %s, %s" % (vr(Qb[t] + 2), vr(tA), vr(vMask)))
        p("    v_mov_b32 %s, 0x41000000" % vr(vThr[t]))
        for r in range(12):
            p("    v_mul_f32 %s, %s, %s" % (vr(Or[t] + r), vr(Or[t] + r), vr(tB)))
        p("    s_branch L_%s_back%d" % (name, t))
    return Kernel(name, (NWG, 1, 1), (256, 1, 1), KS * NT * 13 * 256, p.lines)
```

```python
from asmlib import Program, Alloc, vr, sr
from common import ARG, ARG_BYTES, WS, buf, emit_srd, Kernel, S, D, DF
import math

CSCALE = 1.4426950408889634 * 20 ** -0.5


def f32hex(x):
    import struct
    return "0x%08x" % struct.unpack("<I", struct.pack("<f", x))[0]


def gen_gemm(name, A, lda, K, RT, wmode, Wn, NT, epi, out=None, resid=None, ldw=None):
    p = Program()
    BM = 64 * RT
    MT = S // BM
    lgMT = int(math.log2(MT))
    T = MT * NT
    assert T % 8 == 0
    NK = K // 64
    XCH = BM // 32
    STAGE = BM * 128 + 16384
    LDS = 2 * STAGE
    kA, _, oA, nA = buf(A)

    p("    s_cmp_ge_u32 s2, %d" % T)
    p("    s_cbranch_scc1 L_%s_end" % name)
    p("    s_load_dwordx2 s[4:5], s[0:1], %d" % (ARG[A] if kA == "arg" else ARG["ws"]))
    p("    s_load_dwordx2 s[6:7], s[0:1], %d" % ARG["ws"])
    if wmode == "pair":
        p("    s_load_dwordx2 s[40:41], s[0:1], %d" % ARG[Wn[0]])
        p("    s_load_dwordx2 s[42:43], s[0:1], %d" % ARG[Wn[1]])
    elif wmode == "single":
        p("    s_load_dwordx2 s[40:41], s[0:1], %d" % ARG[Wn[0]])
    else:
        p("    s_load_dwordx2 s[40:41], s[0:1], %d" % ARG["wq"])
    if epi == "resid":
        kO, _, oO, nO = buf(out)
        kR, _, oR, nR = buf(resid)
        if kO == "arg":
            p("    s_load_dwordx2 s[44:45], s[0:1], %d" % ARG[out])
        if kR == "arg":
            p("    s_load_dwordx2 s[46:47], s[0:1], %d" % ARG[resid])
    p("    s_and_b32 s28, s2, 7")
    p("    s_mul_i32 s28, s28, %d" % (T // 8))
    p("    s_lshr_b32 s29, s2, 3")
    p("    s_add_u32 s28, s28, s29")
    p("    s_lshr_b32 s29, s28, %d" % lgMT)
    p("    s_and_b32 s28, s28, %d" % (MT - 1))
    v = Alloc(1)
    vt0 = v(); vt1 = v(); vt2 = v(); vt3 = v()
    vlane = v(); vL31 = v(); vH = v()
    p("    v_lshrrev_b32 %s, 6, v0" % vr(vt0))
    p("    v_and_b32 %s, 63, v0" % vr(vlane))
    p("    v_readfirstlane_b32 s39, %s" % vr(vt0))
    p("    v_and_b32 %s, 31, v0" % vr(vL31))
    p("    v_lshrrev_b32 %s, 5, %s" % (vr(vH), vr(vlane)))
    p("    s_waitcnt lgkmcnt(0)")
    p("    s_and_b32 s37, s39, 1")
    p("    s_lshr_b32 s38, s39, 1")
    emit_srd(p, 8, 4, oA, nA)
    p("    s_mul_i32 s30, s28, %d" % (BM * lda))
    if wmode == "pair":
        LDW = ldw
        p("    s_lshl_b32 s3, s29, 7")
        for sb, sp_, wn_ in ((12, 40, Wn[0]), (16, 42, Wn[1])):
            p("    s_add_u32 s%d, s%d, s3" % (sb, sp_))
            p("    s_addc_u32 s%d, s%d, 0" % (sb + 1, sp_ + 1))
            p("    s_sub_u32 s%d, 0x%x, s3" % (sb + 2, ARG_BYTES[wn_]))
            p("    s_mov_b32 s%d, 0x20000" % (sb + 3))
        p("    s_mov_b32 s33, %d" % LDW)
    elif wmode == "single":
        LDW = ldw
        p("    s_lshl_b32 s3, s29, 8")
        p("    s_add_u32 s12, s40, s3")
        p("    s_addc_u32 s13, s41, 0")
        p("    s_sub_u32 s14, 0x%x, s3" % ARG_BYTES[Wn[0]])
        p("    s_mov_b32 s15, 0x20000")
        p("    s_add_u32 s16, s12, 128")
        p("    s_addc_u32 s17, s13, 0")
        p("    s_sub_u32 s18, s14, 128")
        p("    s_mov_b32 s19, 0x20000")
        p("    s_mov_b32 s33, %d" % LDW)
    else:
        owkv, nwkv = WS["wkv"]
        p("    s_lshl_b32 s3, s29, 8")
        p("    s_add_u32 s12, s40, s3")
        p("    s_addc_u32 s13, s41, 0")
        p("    s_sub_u32 s14, 0x%x, s3" % ARG_BYTES["wq"])
        p("    s_mov_b32 s33, 0x500")
        p("    s_cmp_lt_u32 s29, 5")
        p("    s_cbranch_scc1 L_%s_wq" % name)
        p("    s_add_u32 s12, s6, 0x%x" % owkv)
        p("    s_addc_u32 s13, s7, 0")
        p("    s_mov_b32 s14, 0x%x" % nwkv)
        p("    s_mov_b32 s33, 256")
        p("L_%s_wq:" % name)
        p("    s_mov_b32 s15, 0x20000")
        p("    s_add_u32 s16, s12, 128")
        p("    s_addc_u32 s17, s13, 0")
        p("    s_sub_u32 s18, s14, 128")
        p("    s_mov_b32 s19, 0x20000")
    p("    s_lshl_b32 s32, s33, 6")
    p("    s_mov_b32 s31, 0")
    p("    s_mul_i32 s34, s39, %d" % (XCH * 1024))
    p("    s_lshl_b32 s35, s39, 11")
    p("    s_add_u32 s35, s35, %d" % (BM * 128))

    vXoff = [v() for _ in range(XCH)]
    vWoff = [v(), v()]
    p("    v_lshrrev_b32 %s, 3, %s" % (vr(vt0), vr(vlane)))
    p("    v_lshrrev_b32 %s, 4, %s" % (vr(vt1), vr(vlane)))
    p("    v_and_b32 %s, 7, %s" % (vr(vt2), vr(vlane)))
    p("    s_mul_i32 s3, s39, %d" % (8 * XCH))
    for c in range(XCH):
        p("    v_add_u32 %s, %d, %s" % (vr(vt3), 4 * c, vr(vt1)))
        p("    v_and_b32 %s, 7, %s" % (vr(vt3), vr(vt3)))
        p("    v_xor_b32 %s, %s, %s" % (vr(vt3), vr(vt3), vr(vt2)))
        p("    v_add_u32 %s, s3, %s" % (vr(vXoff[c]), vr(vt0)))
        if c:
            p("    v_add_u32 %s, %d, %s" % (vr(vXoff[c]), 8 * c, vr(vXoff[c])))
        p("    v_mul_u32_u24 %s, 0x%x, %s" % (vr(vXoff[c]), lda, vr(vXoff[c])))
        p("    v_lshl_add_u32 %s, %s, 4, %s" % (vr(vXoff[c]), vr(vt3), vr(vXoff[c])))
        if c:
            p("    v_subrev_u32 %s, %d, %s" % (vr(vXoff[c]), 1024 * c, vr(vXoff[c])))
    p("    v_and_b32 %s, 1, %s" % (vr(vt3), vr(vt1)))
    p("    v_lshlrev_b32 %s, 2, %s" % (vr(vt3), vr(vt3)))
    p("    v_xor_b32 %s, %s, %s" % (vr(vt3), vr(vt3), vr(vt2)))
    p("    s_lshl_b32 s3, s39, 4")
    for c in range(2):
        p("    v_add_u32 %s, s3, %s" % (vr(vWoff[c]), vr(vt0)))
        if c:
            p("    v_add_u32 %s, 8, %s" % (vr(vWoff[c]), vr(vWoff[c])))
        p("    v_mul_lo_u32 %s, %s, s33" % (vr(vWoff[c]), vr(vWoff[c])))
        p("    v_lshl_add_u32 %s, %s, 4, %s" % (vr(vWoff[c]), vr(vt3), vr(vWoff[c])))
        if c:
            p("    v_subrev_u32 %s, %d, %s" % (vr(vWoff[c]), 1024, vr(vWoff[c])))

    vXa = [v() for _ in range(4)]
    vWa = v()
    p("    s_mul_i32 s3, s38, %d" % (32 * RT))
    p("    v_add_u32 %s, s3, %s" % (vr(vt0), vr(vL31)))
    p("    v_lshlrev_b32 %s, 7, %s" % (vr(vt0), vr(vt0)))
    p("    v_bfe_u32 %s, %s, 1, 3" % (vr(vt1), vr(vlane)))
    for kk in range(4):
        p("    v_add_u32 %s, %d, %s" % (vr(vt2), 2 * kk, vr(vH)))
        p("    v_xor_b32 %s, %s, %s" % (vr(vt2), vr(vt2), vr(vt1)))
        p("    v_lshl_add_u32 %s, %s, 4, %s" % (vr(vXa[kk]), vr(vt2), vr(vt0)))
    p("    v_lshrrev_b32 %s, 5, %s" % (vr(vt0), vr(vlane)))
    p("    v_lshlrev_b32 %s, 3, %s" % (vr(vt0), vr(vt0)))
    p("    v_bfe_u32 %s, %s, 2, 2" % (vr(vt1), vr(vlane)))
    p("    v_add_u32 %s, %s, %s" % (vr(vt0), vr(vt0), vr(vt1)))
    p("    v_lshlrev_b32 %s, 7, %s" % (vr(vWa), vr(vt0)))
    p("    v_bfe_u32 %s, %s, 4, 1" % (vr(vt0), vr(vlane)))
    p("    v_lshlrev_b32 %s, 1, %s" % (vr(vt0), vr(vt0)))
    p("    v_bfe_u32 %s, %s, 1, 1" % (vr(vt1), vr(vlane)))
    p("    v_add_u32 %s, %s, %s" % (vr(vt0), vr(vt0), vr(vt1)))
    p("    s_lshl_b32 s3, s37, 2")
    p("    v_add_u32 %s, s3, %s" % (vr(vt0), vr(vt0)))
    p("    v_bfe_u32 %s, %s, 3, 1" % (vr(vt1), vr(vlane)))
    p("    v_lshlrev_b32 %s, 2, %s" % (vr(vt1), vr(vt1)))
    p("    v_xor_b32 %s, %s, %s" % (vr(vt0), vr(vt0), vr(vt1)))
    p("    v_lshl_add_u32 %s, %s, 4, %s" % (vr(vWa), vr(vt0), vr(vWa)))
    p("    v_and_b32 %s, 1, %s" % (vr(vt0), vr(vlane)))
    p("    v_lshl_add_u32 %s, %s, 3, %s" % (vr(vWa), vr(vt0), vr(vWa)))
    p("    v_add_u32 %s, %d, %s" % (vr(vWa), BM * 128, vr(vWa)))

    acc = [[v(16, 4) for _ in range(RT)] for _ in range(2)]
    v.next = (v.next + 3) // 4 * 4
    FS = 8 + 4 * RT
    fr = [v(FS, 4), v(FS, 4)]

    def Wf(st, s): return fr[st] + 4 * s
    def Xf(st, t): return fr[st] + 8 + 4 * t

    for s in range(2):
        for t in range(RT):
            for r in range(16):
                p("    v_mov_b32 %s, 0" % vr(acc[s][t] + r))

    def dma():
        p("    s_add_u32 m0, s36, s34")
        for c in range(XCH):
            p("    buffer_load_dwordx4 %s, s[8:11], s30 offen offset:%d lds" % (vr(vXoff[c]), 1024 * c))
        p("    s_add_u32 m0, s36, s35")
        p("    buffer_load_dwordx4 %s, s[12:15], s31 offen lds" % vr(vWoff[0]))
        p("    buffer_load_dwordx4 %s, s[12:15], s31 offen offset:1024 lds" % vr(vWoff[1]))
        p("    s_add_u32 m0, m0, 0x2000")
        p("    buffer_load_dwordx4 %s, s[16:19], s31 offen lds" % vr(vWoff[0]))
        p("    buffer_load_dwordx4 %s, s[16:19], s31 offen offset:1024 lds" % vr(vWoff[1]))
        p("    s_add_u32 s30, s30, 128")
        p("    s_add_u32 s31, s31, s32")

    def reads(kk, st):
        for t in range(RT):
            p("    ds_read_b128 %s, %s offset:%d" % (vr(Xf(st, t), 4), vr(vXa[kk]), 4096 * t))
        for s in range(2):
            for e in range(2):
                p("    ds_read_b64_tr_b16 %s, %s offset:%d" % (vr(Wf(st, s) + 2 * e, 2), vr(vWa), 8192 * s + (16 * kk + 4 * e) * 128))

    NRD = RT + 4

    p("    s_mov_b32 s36, 0")
    dma()
    p("    s_mov_b32 s36, %d" % STAGE)
    p("    s_mov_b32 s48, %d" % STAGE)
    p("    s_mov_b32 s49, 0")
    p("L_%s_loop:" % name)
    p("    s_waitcnt vmcnt(0)")
    p("    s_barrier")
    p("    s_add_u32 s49, s49, 1")
    p("    s_cmp_ge_u32 s49, %d" % NK)
    p("    s_cbranch_scc1 L_%s_nodma" % name)
    dma()
    p("    s_sub_u32 s36, %d, s36" % STAGE)
    p("L_%s_nodma:" % name)
    reads(0, 0)
    for kk in range(4):
        st = kk & 1
        if kk < 3:
            reads(kk + 1, st ^ 1)
            p("    s_waitcnt lgkmcnt(%d)" % NRD)
        else:
            p("    s_waitcnt lgkmcnt(0)")
        for s in range(2):
            for t in range(RT):
                p("    v_mfma_f32_32x32x16_bf16 %s, %s, %s, %s" % (vr(acc[s][t], 16), vr(Wf(st, s), 4), vr(Xf(st, t), 4), vr(acc[s][t], 16)))
    for kk in range(4):
        p("    v_add_u32 %s, s48, %s" % (vr(vXa[kk]), vr(vXa[kk])))
    p("    v_add_u32 %s, s48, %s" % (vr(vWa), vr(vWa)))
    p("    s_sub_u32 s48, 0, s48")
    p("    s_cmp_lt_u32 s49, %d" % NK)
    p("    s_cbranch_scc1 L_%s_loop" % name)

    vRow = vt0
    p("    s_mul_i32 s3, s28, %d" % BM)
    p("    s_mul_i32 s50, s38, %d" % (32 * RT))
    p("    s_add_u32 s3, s3, s50")
    p("    v_add_u32 %s, s3, %s" % (vr(vRow), vr(vL31)))
    p("    s_mov_b32 s51, 0xffff0000")

    if epi == "resid":
        kO, _, oO, nO = buf(out)
        kR, _, oR, nR = buf(resid)
        emit_srd(p, 20, 44 if kO == "arg" else 6, oO, nO)
        emit_srd(p, 24, 46 if kR == "arg" else 6, oR, nR)
        vOff = vt1
        p("    v_mul_u32_u24 %s, 0x500, %s" % (vr(vOff), vr(vRow)))
        p("    s_lshl_b32 s3, s29, 8")
        p("    s_lshl_b32 s50, s37, 6")
        p("    s_add_u32 s3, s3, s50")
        p("    v_add_u32 %s, s3, %s" % (vr(vOff), vr(vOff)))
        p("    v_lshl_add_u32 %s, %s, 3, %s" % (vr(vOff), vr(vH), vr(vOff)))
        p("    s_mov_b32 s52, 0x%x" % (32 * 1280))
        R = fr[0]
        assert fr[1] == fr[0] + FS
        nneed = 2 * RT * 4 * 2
        assert 2 * FS >= nneed or True
        idx = 0
        regs = {}
        if 2 * FS < nneed:
            R = v(nneed, 4)
        for s in range(2):
            for t in range(RT):
                for i in range(4):
                    regs[(s, t, i)] = R + idx
                    so = "s52" if t else "0"
                    p("    buffer_load_dwordx2 %s, %s, s[24:27], %s offen offset:%d" % (vr(R + idx, 2), vr(vOff), so, 128 * s + 16 * i))
                    idx += 2
        tA = v(2, 2); tB = v(2, 2); tC = v(2, 2)
        first = True
        for s in range(2):
            for t in range(RT):
                for i in range(4):
                    a = acc[s][t] + 4 * i
                    r0 = regs[(s, t, i)]
                    p("    v_cvt_pk_bf16_f32 %s, %s, %s" % (vr(tA), vr(a), vr(a + 1)))
                    p("    v_cvt_pk_bf16_f32 %s, %s, %s" % (vr(tA + 1), vr(a + 2), vr(a + 3)))
                    p("    v_lshlrev_b32 %s, 16, %s" % (vr(a), vr(tA)))
                    p("    v_and_b32 %s, s51, %s" % (vr(a + 1), vr(tA)))
                    p("    v_lshlrev_b32 %s, 16, %s" % (vr(a + 2), vr(tA + 1)))
                    p("    v_and_b32 %s, s51, %s" % (vr(a + 3), vr(tA + 1)))
                    if first:
                        p("    s_waitcnt vmcnt(0)")
                        first = False
                    p("    v_lshlrev_b32 %s, 16, %s" % (vr(tB), vr(r0)))
                    p("    v_and_b32 %s, s51, %s" % (vr(tB + 1), vr(r0)))
                    p("    v_lshlrev_b32 %s, 16, %s" % (vr(tC), vr(r0 + 1)))
                    p("    v_and_b32 %s, s51, %s" % (vr(tC + 1), vr(r0 + 1)))
                    p("    v_pk_add_f32 %s, %s, %s" % (vr(a, 2), vr(a, 2), vr(tB, 2)))
                    p("    v_pk_add_f32 %s, %s, %s" % (vr(a + 2, 2), vr(a + 2, 2), vr(tC, 2)))
                    p("    v_cvt_pk_bf16_f32 %s, %s, %s" % (vr(r0), vr(a), vr(a + 1)))
                    p("    v_cvt_pk_bf16_f32 %s, %s, %s" % (vr(r0 + 1), vr(a + 2), vr(a + 3)))
                    so = "s52" if t else "0"
                    p("    buffer_store_dwordx2 %s, %s, s[20:23], %s offen offset:%d" % (vr(r0, 2), vr(vOff), so, 128 * s + 16 * i))
    elif epi == "geglu":
        oH, nH = WS["h"]
        emit_srd(p, 20, 6, oH, nH)
        vOff = vt1
        p("    v_mul_u32_u24 %s, %d, %s" % (vr(vOff), DF * 2, vr(vRow)))
        p("    s_lshl_b32 s3, s29, 7")
        p("    s_lshl_b32 s50, s37, 6")
        p("    s_add_u32 s3, s3, s50")
        p("    v_add_u32 %s, s3, %s" % (vr(vOff), vr(vOff)))
        p("    v_lshl_add_u32 %s, %s, 3, %s" % (vr(vOff), vr(vH), vr(vOff)))
        p("    s_mov_b32 s52, 0x%x" % (32 * DF * 2))
        k1 = -2.0 * math.sqrt(2.0 / math.pi) * 1.4426950408889634
        k2 = k1 * 0.044715
        p("    s_mov_b32 s54, %s" % f32hex(k2)); p("    s_mov_b32 s55, %s" % f32hex(k2))
        tA = v(2, 2); tB = v(2, 2); tW = v(2, 2); tK1 = v(2, 2)
        p("    v_mov_b32 %s, %s" % (vr(tK1), f32hex(k1))); p("    v_mov_b32 %s, %s" % (vr(tK1 + 1), f32hex(k1)))
        for t in range(RT):
            for i in range(4):
                g = acc[0][t] + 4 * i
                u = acc[1][t] + 4 * i
                p("    v_cvt_pk_bf16_f32 %s, %s, %s" % (vr(tA), vr(g), vr(g + 1)))
                p("    v_cvt_pk_bf16_f32 %s, %s, %s" % (vr(tA + 1), vr(g + 2), vr(g + 3)))
                p("    v_cvt_pk_bf16_f32 %s, %s, %s" % (vr(tB), vr(u), vr(u + 1)))
                p("    v_cvt_pk_bf16_f32 %s, %s, %s" % (vr(tB + 1), vr(u + 2), vr(u + 3)))
                p("    v_lshlrev_b32 %s, 16, %s" % (vr(g), vr(tA)))
                p("    v_and_b32 %s, s51, %s" % (vr(g + 1), vr(tA)))
                p("    v_lshlrev_b32 %s, 16, %s" % (vr(g + 2), vr(tA + 1)))
                p("    v_and_b32 %s, s51, %s" % (vr(g + 3), vr(tA + 1)))
                p("    v_lshlrev_b32 %s, 16, %s" % (vr(u), vr(tB)))
                p("    v_and_b32 %s, s51, %s" % (vr(u + 1), vr(tB)))
                p("    v_lshlrev_b32 %s, 16, %s" % (vr(u + 2), vr(tB + 1)))
                p("    v_and_b32 %s, s51, %s" % (vr(u + 3), vr(tB + 1)))
                for hh in range(2):
                    gg = g + 2 * hh
                    p("    v_pk_mul_f32 %s, %s, %s" % (vr(tW, 2), vr(gg, 2), vr(gg, 2)))
                    p("    v_pk_fma_f32 %s, %s, s[54:55], %s" % (vr(tW, 2), vr(tW, 2), vr(tK1, 2)))
                    p("    v_pk_mul_f32 %s, %s, %s" % (vr(tW, 2), vr(tW, 2), vr(gg, 2)))
                    p("    v_exp_f32 %s, %s" % (vr(tW), vr(tW)))
                    p("    v_exp_f32 %s, %s" % (vr(tW + 1), vr(tW + 1)))
                    p("    v_add_f32 %s, 1.0, %s" % (vr(tW), vr(tW)))
                    p("    v_add_f32 %s, 1.0, %s" % (vr(tW + 1), vr(tW + 1)))
                    p("    v_rcp_f32 %s, %s" % (vr(tW), vr(tW)))
                    p("    v_rcp_f32 %s, %s" % (vr(tW + 1), vr(tW + 1)))
                    p("    v_pk_mul_f32 %s, %s, %s" % (vr(gg, 2), vr(gg, 2), vr(tW, 2)))
                p("    v_cvt_pk_bf16_f32 %s, %s, %s" % (vr(tA), vr(g), vr(g + 1)))
                p("    v_cvt_pk_bf16_f32 %s, %s, %s" % (vr(tA + 1), vr(g + 2), vr(g + 3)))
                p("    v_lshlrev_b32 %s, 16, %s" % (vr(g), vr(tA)))
                p("    v_and_b32 %s, s51, %s" % (vr(g + 1), vr(tA)))
                p("    v_lshlrev_b32 %s, 16, %s" % (vr(g + 2), vr(tA + 1)))
                p("    v_and_b32 %s, s51, %s" % (vr(g + 3), vr(tA + 1)))
                p("    v_pk_mul_f32 %s, %s, %s" % (vr(g, 2), vr(g, 2), vr(u, 2)))
                p("    v_pk_mul_f32 %s, %s, %s" % (vr(g + 2, 2), vr(g + 2, 2), vr(u + 2, 2)))
                p("    v_cvt_pk_bf16_f32 %s, %s, %s" % (vr(u), vr(g), vr(g + 1)))
                p("    v_cvt_pk_bf16_f32 %s, %s, %s" % (vr(u + 1), vr(g + 2), vr(g + 3)))
                so = "s52" if t else "0"
                p("    buffer_store_dwordx2 %s, %s, s[20:23], %s offen offset:%d" % (vr(u, 2), vr(vOff), so, 16 * i))
    elif epi == "qkv":
        oQ, nQ = WS["q"]
        oK, nK = WS["kext"]
        oV, nV = WS["vt"]
        p("    s_cmp_ge_u32 s29, 5")
        p("    s_cbranch_scc1 L_%s_kv" % name)
        emit_srd(p, 20, 6, oQ, nQ)
        vOff = vt1
        p("    v_mul_u32_u24 %s, 0x500, %s" % (vr(vOff), vr(vRow)))
        p("    s_lshl_b32 s3, s29, 8")
        p("    s_lshl_b32 s50, s37, 6")
        p("    s_add_u32 s3, s3, s50")
        p("    v_add_u32 %s, s3, %s" % (vr(vOff), vr(vOff)))
        p("    v_lshl_add_u32 %s, %s, 3, %s" % (vr(vOff), vr(vH), vr(vOff)))
        p("    s_mov_b32 s52, 0x%x" % (32 * 1280))
        p("    s_mov_b32 s54, %s" % f32hex(CSCALE)); p("    s_mov_b32 s55, %s" % f32hex(CSCALE))
        for s in range(2):
            for t in range(RT):
                for i in range(4):
                    a = acc[s][t] + 4 * i
                    p("    v_pk_mul_f32 %s, %s, s[54:55]" % (vr(a, 2), vr(a, 2)))
                    p("    v_pk_mul_f32 %s, %s, s[54:55]" % (vr(a + 2, 2), vr(a + 2, 2)))
                    p("    v_cvt_pk_bf16_f32 %s, %s, %s" % (vr(a), vr(a), vr(a + 1)))
                    p("    v_cvt_pk_bf16_f32 %s, %s, %s" % (vr(a + 1), vr(a + 2), vr(a + 3)))
                    so = "s52" if t else "0"
                    p("    buffer_store_dwordx2 %s, %s, s[20:23], %s offen offset:%d" % (vr(a, 2), vr(vOff), so, 128 * s + 16 * i))
        p("    s_endpgm")
        p("L_%s_kv:" % name)
        p("    s_cmp_lg_u32 s37, 0")
        p("    s_cbranch_scc1 L_%s_end" % name)
        emit_srd(p, 20, 6, oK, nK)
        emit_srd(p, 24, 6, oV, nV)
        p("    s_mov_b32 s56, 0")
        p("    s_mov_b32 s57, -1")
        p("    v_mov_b32 %s, 0" % vr(vt3))
        vOne = v()
        p("    v_mov_b32 %s, 0x3f80" % vr(vOne))
        for t in range(RT):
            vOff = vt1
            p("    v_add_u32 %s, %d, %s" % (vr(vOff), 32 * t, vr(vRow)))
            p("    v_lshlrev_b32 %s, 6, %s" % (vr(vOff), vr(vOff)))
            p("    v_lshl_add_u32 %s, %s, 3, %s" % (vr(vOff), vr(vH), vr(vOff)))
            a = acc[0][t]
            for i in range(3):
                p("    v_cvt_pk_bf16_f32 %s, %s, %s" % (vr(a + 4 * i), vr(a + 4 * i), vr(a + 4 * i + 1)))
                p("    v_cvt_pk_bf16_f32 %s, %s, %s" % (vr(a + 4 * i + 1), vr(a + 4 * i + 2), vr(a + 4 * i + 3)))
            p("    v_cndmask_b32 %s, %s, %s, s[56:57]" % (vr(a + 8), vr(a + 8), vr(vOne)))
            p("    v_cndmask_b32 %s, %s, %s, s[56:57]" % (vr(a + 9), vr(a + 9), vr(vt3)))
            p("    v_mov_b32 %s, 0" % vr(a + 12)); p("    v_mov_b32 %s, 0" % vr(a + 13))
            for i in range(4):
                p("    buffer_store_dwordx2 %s, %s, s[20:23], 0 offen offset:%d" % (vr(a + 4 * i, 2), vr(vOff), 16 * i))
            vV = vt2
            p("    v_add_u32 %s, %d, %s" % (vr(vOff), 32 * t, vr(vRow)))
            p("    v_lshrrev_b32 %s, 5, %s" % (vr(vV), vr(vOff)))
            p("    v_lshlrev_b32 %s, 11, %s" % (vr(vV), vr(vV)))
            vp = v.next
            tA = v(2, 2)
            p("    v_and_b32 %s, 0x13, %s" % (vr(tA), vr(vOff)))
            p("    v_bfe_u32 %s, %s, 2, 1" % (vr(tA + 1), vr(vOff)))
            p("    v_lshl_add_u32 %s, %s, 3, %s" % (vr(tA), vr(tA + 1), vr(tA)))
            p("    v_bfe_u32 %s, %s, 3, 1" % (vr(tA + 1), vr(vOff)))
            p("    v_lshl_add_u32 %s, %s, 2, %s" % (vr(tA), vr(tA + 1), vr(tA)))
            p("    v_lshl_add_u32 %s, %s, 1, %s" % (vr(vV), vr(tA), vr(vV)))
            p("    v_lshl_add_u32 %s, %s, 8, %s" % (vr(vV), vr(vH), vr(vV)))
            b = acc[1][t]
            for i in range(3):
                p("    v_cvt_pk_bf16_f32 %s, %s, %s" % (vr(b + 4 * i), vr(b + 4 * i), vr(b + 4 * i + 1)))
                p("    v_cvt_pk_bf16_f32 %s, %s, %s" % (vr(b + 4 * i + 1), vr(b + 4 * i + 2), vr(b + 4 * i + 3)))
            p("    v_cndmask_b32 %s, %s, %s, s[56:57]" % (vr(b + 8), vr(b + 8), vr(vOne)))
            p("    v_cndmask_b32 %s, %s, %s, s[56:57]" % (vr(b + 9), vr(b + 9), vr(vt3)))
            p("    v_mov_b32 %s, 0" % vr(b + 12)); p("    v_mov_b32 %s, 0" % vr(b + 13))
            for i in range(4):
                for jj in range(2):
                    reg = b + 4 * i + jj
                    p("    buffer_store_short %s, %s, s[24:27], 0 offen offset:%d" % (vr(reg), vr(vV), (8 * i + 2 * jj) * 64))
                    p("    buffer_store_short_d16_hi %s, %s, s[24:27], 0 offen offset:%d" % (vr(reg), vr(vV), (8 * i + 2 * jj + 1) * 64))
            v.next = vp
    p("L_%s_end:" % name)
    p("    s_endpgm")
    return Kernel(name, (T, 1, 1), (256, 1, 1), LDS, p.lines)
```

```python
from asmlib import Program, Alloc, vr, sr
from common import ARG, ARG_BYTES, WS, buf, emit_srd, Kernel, S, D


def gen_ln(name, src, dst, pack_wkv=False):
    p = Program()
    NLN = 128
    NW = NLN + (10 if pack_wkv else 0)
    ksrc, _, osrc, nsrc = buf(src)
    kdst, _, odst, ndst = buf(dst)
    p("    s_cmp_ge_u32 s2, %d" % NW)
    p("    s_cbranch_scc1 L_%s_end" % name)
    p("    s_load_dwordx2 s[4:5], s[0:1], %d" % (ARG[src] if ksrc == "arg" else ARG["ws"]))
    p("    s_load_dwordx2 s[6:7], s[0:1], %d" % (ARG[dst] if kdst == "arg" else ARG["ws"]))
    if pack_wkv:
        p("    s_load_dwordx2 s[16:17], s[0:1], %d" % ARG["wk"])
        p("    s_load_dwordx2 s[18:19], s[0:1], %d" % ARG["wv"])
    p("    s_waitcnt lgkmcnt(0)")
    if pack_wkv:
        p("    s_cmp_ge_u32 s2, %d" % NLN)
        p("    s_cbranch_scc1 L_%s_pack" % name)
    emit_srd(p, 8, 4, osrc, nsrc)
    emit_srd(p, 12, 6, odst, ndst)
    v = Alloc(1)
    vrow = v(); voff = v()
    Dr = v(20, 4)
    F = v(40, 2)
    acc = v(4, 2)
    t0 = v(); t1 = v(); t2 = v(); t3 = v()
    p("    v_lshrrev_b32 %s, 4, v0" % vr(vrow))
    p("    s_lshl_b32 s3, s2, 4")
    p("    v_add_u32 %s, s3, %s" % (vr(vrow), vr(vrow)))
    p("    v_mul_u32_u24 %s, 0x500, %s" % (vr(voff), vr(vrow)))
    p("    v_and_b32 %s, 15, v0" % vr(t0))
    p("    v_lshl_add_u32 %s, %s, 4, %s" % (vr(voff), vr(t0), vr(voff)))
    for i in range(5):
        p("    buffer_load_dwordx4 %s, %s, s[8:11], 0 offen offset:%d" % (vr(Dr + 4 * i, 4), vr(voff), 256 * i))
    p("    s_mov_b32 s20, 0xffff0000")
    p("    s_waitcnt vmcnt(0)")
    for j in range(20):
        p("    v_lshlrev_b32 %s, 16, %s" % (vr(F + 2 * j), vr(Dr + j)))
        p("    v_and_b32 %s, s20, %s" % (vr(F + 2 * j + 1), vr(Dr + j)))
    p("    v_pk_add_f32 %s, %s, %s" % (vr(acc, 2), vr(F, 2), vr(F + 2, 2)))
    p("    v_pk_add_f32 %s, %s, %s" % (vr(acc + 2, 2), vr(F + 4, 2), vr(F + 6, 2)))
    for j in range(4, 20, 2):
        p("    v_pk_add_f32 %s, %s, %s" % (vr(acc, 2), vr(acc, 2), vr(F + 2 * j, 2)))
        p("    v_pk_add_f32 %s, %s, %s" % (vr(acc + 2, 2), vr(acc + 2, 2), vr(F + 2 * j + 2, 2)))
    p("    v_pk_add_f32 %s, %s, %s" % (vr(acc, 2), vr(acc, 2), vr(acc + 2, 2)))
    p("    v_add_f32 %s, %s, %s" % (vr(t0), vr(acc), vr(acc + 1)))

    def rowreduce(r):
        for sh in (8, 4, 2, 1):
            p("    v_add_f32_dpp %s, %s, %s row_ror:%d row_mask:0xf bank_mask:0xf" % (vr(t3), vr(r), vr(r), sh))
            p("    v_mov_b32 %s, %s" % (vr(r), vr(t3)))

    rowreduce(t0)
    p("    s_mov_b32 s21, 0x3acccccd")
    p("    v_mul_f32 %s, s21, %s" % (vr(t0), vr(t0)))
    p("    v_mov_b32 %s, %s" % (vr(acc), vr(t0)))
    p("    v_mov_b32 %s, %s" % (vr(acc + 1), vr(t0)))
    tmp = v(2, 2); q0 = v(2, 2); q1 = v(2, 2)
    p("    v_mov_b32 %s, 0" % vr(q0)); p("    v_mov_b32 %s, 0" % vr(q0 + 1))
    p("    v_mov_b32 %s, 0" % vr(q1)); p("    v_mov_b32 %s, 0" % vr(q1 + 1))
    tmpb = v(2, 2)
    for j in range(0, 20, 2):
        p("    v_pk_add_f32 %s, %s, %s neg_lo:[0,1] neg_hi:[0,1]" % (vr(tmp, 2), vr(F + 2 * j, 2), vr(acc, 2)))
        p("    v_pk_add_f32 %s, %s, %s neg_lo:[0,1] neg_hi:[0,1]" % (vr(tmpb, 2), vr(F + 2 * j + 2, 2), vr(acc, 2)))
        p("    v_pk_fma_f32 %s, %s, %s, %s" % (vr(q0, 2), vr(tmp, 2), vr(tmp, 2), vr(q0, 2)))
        p("    v_pk_fma_f32 %s, %s, %s, %s" % (vr(q1, 2), vr(tmpb, 2), vr(tmpb, 2), vr(q1, 2)))
    p("    v_pk_add_f32 %s, %s, %s" % (vr(q0, 2), vr(q0, 2), vr(q1, 2)))
    p("    v_add_f32 %s, %s, %s" % (vr(t1), vr(q0), vr(q0 + 1)))
    rowreduce(t1)
    p("    v_mul_f32 %s, s21, %s" % (vr(t1), vr(t1)))
    p("    v_cvt_pk_bf16_f32 %s, %s, %s" % (vr(t2), vr(t0), vr(t1)))
    p("    v_lshlrev_b32 %s, 16, %s" % (vr(t0), vr(t2)))
    p("    v_and_b32 %s, s20, %s" % (vr(t1), vr(t2)))
    p("    s_mov_b32 s22, 0x3727c5ac")
    p("    v_add_f32 %s, s22, %s" % (vr(t1), vr(t1)))
    p("    v_cvt_pk_bf16_f32 %s, %s, %s" % (vr(t1), vr(t1), vr(t1)))
    p("    v_lshlrev_b32 %s, 16, %s" % (vr(t1), vr(t1)))
    p("    v_sqrt_f32 %s, %s" % (vr(t1), vr(t1)))
    p("    v_cvt_pk_bf16_f32 %s, %s, %s" % (vr(t1), vr(t1), vr(t1)))
    p("    v_lshlrev_b32 %s, 16, %s" % (vr(t1), vr(t1)))
    p("    v_rcp_f32 %s, %s" % (vr(t2), vr(t1)))
    p("    v_fma_f32 %s, -%s, %s, 2.0" % (vr(t3), vr(t1), vr(t2)))
    p("    v_mul_f32 %s, %s, %s" % (vr(t2), vr(t2), vr(t3)))
    p("    v_mov_b32 %s, %s" % (vr(acc), vr(t0))); p("    v_mov_b32 %s, %s" % (vr(acc + 1), vr(t0)))
    p("    v_mov_b32 %s, %s" % (vr(acc + 2), vr(t2))); p("    v_mov_b32 %s, %s" % (vr(acc + 3), vr(t2)))
    den2 = v(2, 2)
    p("    v_mov_b32 %s, %s" % (vr(den2), vr(t1))); p("    v_mov_b32 %s, %s" % (vr(den2 + 1), vr(t1)))
    r0 = v(2, 2); er = v(2, 2)
    for j in range(20):
        f = F + 2 * j
        p("    v_pk_add_f32 %s, %s, %s neg_lo:[0,1] neg_hi:[0,1]" % (vr(f, 2), vr(f, 2), vr(acc, 2)))
        p("    v_cvt_pk_bf16_f32 %s, %s, %s" % (vr(Dr + j), vr(f), vr(f + 1)))
        p("    v_lshlrev_b32 %s, 16, %s" % (vr(f), vr(Dr + j)))
        p("    v_and_b32 %s, s20, %s" % (vr(f + 1), vr(Dr + j)))
        p("    v_pk_mul_f32 %s, %s, %s" % (vr(r0, 2), vr(f, 2), vr(acc + 2, 2)))
        p("    v_pk_fma_f32 %s, %s, %s, %s neg_lo:[1,0,0] neg_hi:[1,0,0]" % (vr(er, 2), vr(r0, 2), vr(den2, 2), vr(f, 2)))
        p("    v_pk_fma_f32 %s, %s, %s, %s" % (vr(r0, 2), vr(er, 2), vr(acc + 2, 2), vr(r0, 2)))
        p("    v_cvt_pk_bf16_f32 %s, %s, %s" % (vr(Dr + j), vr(r0), vr(r0 + 1)))
    for i in range(5):
        p("    buffer_store_dwordx4 %s, %s, s[12:15], 0 offen offset:%d" % (vr(Dr + 4 * i, 4), vr(voff), 256 * i))
    p("    s_endpgm")
    if pack_wkv:
        p("L_%s_pack:" % name)
        owkv, nwkv = WS["wkv"]
        emit_srd(p, 8, 16, 0, ARG_BYTES["wk"])
        emit_srd(p, 12, 18, 0, ARG_BYTES["wv"])
        emit_srd(p, 24, 6, owkv, nwkv)
        v = Alloc(1)
        kr = v(); part = v(); a = v()
        A = v(10, 2); B = v(10, 2); R = v(16, 4)
        p("    s_sub_u32 s3, s2, %d" % NLN)
        p("    s_lshl_b32 s3, s3, 6")
        p("    v_lshrrev_b32 %s, 2, v0" % vr(kr))
        p("    v_add_u32 %s, s3, %s" % (vr(kr), vr(kr)))
        p("    v_and_b32 %s, 3, v0" % vr(part))
        p("    v_mul_u32_u24 %s, 40, %s" % (vr(a), vr(kr)))
        for i in range(5):
            p("    buffer_load_dwordx2 %s, %s, s[8:11], 0 offen offset:%d" % (vr(A + 2 * i, 2), vr(a), 8 * i))
            p("    buffer_load_dwordx2 %s, %s, s[12:15], 0 offen offset:%d" % (vr(B + 2 * i, 2), vr(a), 8 * i))
        p("    v_cmp_eq_u32 vcc, 2, %s" % vr(part))
        p("    v_and_b32 %s, 1, %s" % (vr(a), vr(part)))
        p("    v_cmp_eq_u32 s[28:29], 1, %s" % vr(a))
        p("    s_waitcnt vmcnt(0)")
        for i in range(10):
            p("    v_cndmask_b32 %s, %s, %s, vcc" % (vr(R + i), vr(A + i), vr(B + i)))
            p("    v_cndmask_b32 %s, %s, 0, s[28:29]" % (vr(R + i), vr(R + i)))
        for i in range(10, 16):
            p("    v_mov_b32 %s, 0" % vr(R + i))
        p("    v_lshlrev_b32 %s, 8, %s" % (vr(a), vr(kr)))
        p("    v_lshl_add_u32 %s, %s, 6, %s" % (vr(a), vr(part), vr(a)))
        for i in range(4):
            p("    buffer_store_dwordx4 %s, %s, s[24:27], 0 offen offset:%d" % (vr(R + 4 * i, 4), vr(a), 16 * i))
        p("    s_endpgm")
    p("L_%s_end:" % name)
    p("    s_endpgm")
    return Kernel(name, (NW, 1, 1), (256, 1, 1), 0, p.lines)
```

```python
import sys
from common import build_file, WS, WS_TOTAL
import k_ln, k_gemm, k_attn

NAME = "interleave_layers__grouped_kv_mqa__glu_gated_geglu__prompt"
HEADER = open("cdna_kernels/%s.s.ref" % NAME).read().split("\n")
hdr = [l for l in HEADER if l.startswith(";") and "@launch" not in l]

def main(path, verbose=False, mode="full"):
    kernels = []
    launches = []
    def add(k):
        kernels.append(k)
        launches.append((k.name, k.grid, k.block, k.lds))
    G = k_gemm.gen_gemm
    xs = ["x", "x1", "x2", "x3", "out"]
    for L in range(2):
        a, b, c = xs[2 * L], xs[2 * L + 1], xs[2 * L + 2]
        n = L + 1
        add(k_ln.gen_ln("ln%da_kernel" % n, a, "xn", pack_wkv=(L == 0)))
        add(G("qkv%d_kernel" % n, "xn", 1280, 640, 1, "qkv", None, 6, "qkv"))
        add(k_attn.gen_attn("attn%d_kernel" % n))
        add(G("wo%d_kernel" % n, "o", 1280, 640, 1, "single", ("wo",), 5, "resid", out=b, resid=a, ldw=1280))
        add(k_ln.gen_ln("ln%db_kernel" % n, b, "xn"))
        add(G("gu%d_kernel" % n, "xn", 1280, 640, 2, "pair", ("wg", "wu"), 27, "geglu", ldw=3456))
        add(G("dn%d_kernel" % n, "h", 3456, 1728, 1, "single", ("wd",), 5, "resid", out=c, resid=b, ldw=1280))
    text, stats = build_file(kernels, launches, hdr, verbose)
    open(path, "w").write(text)
    for s in stats:
        print("%-14s vgpr %3d sgpr %3d nops %3d lines %d" % s)

if __name__ == "__main__":
    main(sys.argv[1] if len(sys.argv) > 1 else "cdna_kernels/%s.s" % NAME, "-v" in sys.argv)
```

```python
import sys
from asmlib import insert_hazard_nops, check_waitcnt, max_regs

S, D, H, DH, DF = 2048, 640, 32, 20, 1728

ARG = dict(x=0, wq=8, wk=16, wv=24, wo=32, bx=40, wg=48, wu=56, wd=64, out=72, dbg=80, ws=88)
ARG_BYTES = dict(x=S * D * 2, wq=D * D * 2, wk=D * DH * 2, wv=D * DH * 2, wo=D * D * 2,
                 bx=S * D * 2, wg=D * DF * 2, wu=D * DF * 2, wd=DF * D * 2, out=S * D * 2)

XB = S * D * 2
WS = {}
_o = 0


def _ws(name, nbytes):
    global _o
    WS[name] = (_o, nbytes)
    _o += (nbytes + 4095) // 4096 * 4096


_ws("xn", XB)
_ws("q", XB)
_ws("kext", S * 64)
_ws("vt", 64 * 2048)
_ws("wkv", D * 256)
_ws("o", XB)
_ws("x1", XB)
_ws("x2", XB)
_ws("x3", XB)
_ws("h", S * DF * 2)
_ws("stats", S * 160)
_ws("csq", 768 * 4)
_ws("csg", DF * 4)
_ws("csu", DF * 4)
WS["prof"] = (64 << 20, 1 << 20)
WS_TOTAL = _o


def buf(name):
    if name in ARG_BYTES:
        return ("arg", name, 0, ARG_BYTES[name])
    off, nb = WS[name]
    return ("ws", name, off, nb)


class Kernel:
    def __init__(self, name, grid, block, lds, lines, nsgpr=None):
        self.name, self.grid, self.block, self.lds, self.lines = name, grid, block, lds, lines
        self.nsgpr = nsgpr


def emit_srd(p, sb, sptr_lo, off, nbytes, tmp_ok=True):
    if off:
        p("    s_add_u32 s%d, s%d, 0x%x" % (sb, sptr_lo, off))
        p("    s_addc_u32 s%d, s%d, 0" % (sb + 1, sptr_lo + 1))
    else:
        p("    s_mov_b32 s%d, s%d" % (sb, sptr_lo))
        p("    s_mov_b32 s%d, s%d" % (sb + 1, sptr_lo + 1))
    p("    s_mov_b32 s%d, 0x%x" % (sb + 2, nbytes))
    p("    s_mov_b32 s%d, 0x20000" % (sb + 3))


def finish_kernel(k, verbose=False):
    lines, n = insert_hazard_nops(k.lines, verbose=verbose)
    errs = check_waitcnt(lines, k.name)
    for e in errs:
        sys.stderr.write("WAITCNT ERROR: " + e + "\n")
    if errs:
        raise SystemExit("waitcnt errors in " + k.name)
    mv, ms = max_regs(lines)
    return lines, mv + 1, ms + 1, n


def build_file(kernels, launches, header_comment_lines, verbose=False):
    out = []
    out += header_comment_lines
    for (name, grid, block, lds) in launches:
        out.append("; @launch kernel=%s grid=(%d,%d,%d) block=(%d,%d,%d) lds=%d" % (
            name, grid[0], grid[1], grid[2], block[0], block[1], block[2], lds))
    out.append('.amdgcn_target "amdgcn-amd-amdhsa--gfx950"')
    out.append(".text")
    descs = []
    stats = []
    for k in kernels:
        lines, nv, ns, nn = finish_kernel(k, verbose)
        out.append(".globl %s" % k.name)
        out.append(".p2align 8")
        out.append(".type %s,@function" % k.name)
        out.append("%s:" % k.name)
        out += lines
        nvr = max(nv, 8)
        acc = (nvr + 3) // 4 * 4
        descs.append("\n".join([
            ".amdhsa_kernel %s" % k.name,
            "  .amdhsa_next_free_vgpr %d" % nvr,
            "  .amdhsa_next_free_sgpr %d" % max(ns, 16),
            "  .amdhsa_accum_offset %d" % acc,
            "  .amdhsa_group_segment_fixed_size 0",
            "  .amdhsa_kernarg_size 96",
            "  .amdhsa_user_sgpr_count 2",
            "  .amdhsa_user_sgpr_kernarg_segment_ptr 1",
            "  .amdhsa_system_sgpr_workgroup_id_x 1",
            "  .amdhsa_float_denorm_mode_32 3",
            "  .amdhsa_float_denorm_mode_16_64 3",
            ".end_amdhsa_kernel"]))
        stats.append((k.name, nv, ns, nn, len(lines)))
    out.append('.section .rodata,"a"')
    for d in descs:
        out.append(".p2align 6")
        out.append(d)
    return "\n".join(out) + "\n", stats
```

```python
from asmlib import Program, Alloc, vr, sr
from common import ARG, ARG_BYTES, WS, buf, emit_srd, Kernel, S, D, DF
import math

CSCALE = 1.4426950408889634 * 20 ** -0.5


def f32hex(x):
    import struct
    return "0x%08x" % struct.unpack("<I", struct.pack("<f", x))[0]


def gen_gemm(name, A, lda, K, RT, wmode, Wn, NT, epi, out=None, resid=None, ldw=None, NS=4, ln=False, dbg=0, prof=False):
    p = Program()
    BM = 64 * RT
    MT = S // BM
    lgMT = int(math.log2(MT))
    T = MT * NT
    assert T % 8 == 0
    NK = K // 64
    XCH = BM // 32
    STAGE = BM * 128 + 16384
    LDS = NS * STAGE
    DPS = XCH + 4
    kA, _, oA, nA = buf(A)

    p("    s_cmp_ge_u32 s2, %d" % T)
    p("    s_cbranch_scc1 L_%s_end" % name)
    p("    s_load_dwordx2 s[4:5], s[0:1], %d" % (ARG[A] if kA == "arg" else ARG["ws"]))
    p("    s_load_dwordx2 s[6:7], s[0:1], %d" % ARG["ws"])
    if wmode == "pair":
        p("    s_load_dwordx2 s[40:41], s[0:1], %d" % ARG[Wn[0]])
        p("    s_load_dwordx2 s[42:43], s[0:1], %d" % ARG[Wn[1]])
    elif wmode == "single":
        p("    s_load_dwordx2 s[40:41], s[0:1], %d" % ARG[Wn[0]])
    else:
        p("    s_load_dwordx2 s[40:41], s[0:1], %d" % ARG["wq"])
    if epi == "resid":
        kO, _, oO, nO = buf(out)
        kR, _, oR, nR = buf(resid)
        if kO == "arg":
            p("    s_load_dwordx2 s[44:45], s[0:1], %d" % ARG[out])
        if kR == "arg":
            p("    s_load_dwordx2 s[46:47], s[0:1], %d" % ARG[resid])
    if prof:
        p("    s_memtime s[64:65]")
    p("    s_and_b32 s28, s2, 7")
    p("    s_mul_i32 s28, s28, %d" % (T // 8))
    p("    s_lshr_b32 s29, s2, 3")
    p("    s_add_u32 s28, s28, s29")
    p("    s_lshr_b32 s29, s28, %d" % lgMT)
    p("    s_and_b32 s28, s28, %d" % (MT - 1))
    v = Alloc(1)
    vt0 = v(); vt1 = v(); vt2 = v(); vt3 = v()
    vlane = v(); vL31 = v(); vH = v()
    v.next = (v.next + 3) // 4 * 4
    acc = [[v(16, 4) for _ in range(RT)] for _ in range(2)]
    FS = 8 + 4 * RT
    fr = [v(FS, 4), v(FS, 4)]
    assert fr[1] + FS - acc[0][0] >= 40 * RT
    p("    v_lshrrev_b32 %s, 6, v0" % vr(vt0))
    p("    v_and_b32 %s, 63, v0" % vr(vlane))
    p("    v_readfirstlane_b32 s39, %s" % vr(vt0))
    p("    v_and_b32 %s, 31, v0" % vr(vL31))
    p("    v_lshrrev_b32 %s, 5, %s" % (vr(vH), vr(vlane)))
    p("    s_waitcnt lgkmcnt(0)")
    p("    s_and_b32 s37, s39, 1")
    p("    s_lshr_b32 s38, s39, 1")
    if ln:
        oSt, nSt = WS["stats"]
        emit_srd(p, 24, 6, oSt, nSt)
        p("    s_mul_i32 s3, s28, %d" % BM)
        p("    s_mul_i32 s50, s38, %d" % (32 * RT))
        p("    s_add_u32 s3, s3, s50")
        p("    v_add_u32 %s, s3, %s" % (vr(vt1), vr(vL31)))
        p("    v_mul_u32_u24 %s, 160, %s" % (vr(vt1), vr(vt1)))
        p("    s_mov_b32 s50, %d" % (32 * 160))
        ST = acc[0][0]
        for t in range(RT):
            for i in range(10):
                p("    buffer_load_dwordx4 %s, %s, s[24:27], %s offen offset:%d" % (vr(ST + 40 * t + 4 * i, 4), vr(vt1), "s50" if t else "0", 16 * i))
    emit_srd(p, 8, 4, oA, nA)
    p("    s_mul_i32 s30, s28, %d" % (BM * lda))
    if wmode == "pair":
        LDW = ldw
        p("    s_lshl_b32 s3, s29, 7")
        for sb, sp_, wn_ in ((12, 40, Wn[0]), (16, 42, Wn[1])):
            p("    s_add_u32 s%d, s%d, s3" % (sb, sp_))
            p("    s_addc_u32 s%d, s%d, 0" % (sb + 1, sp_ + 1))
            p("    s_sub_u32 s%d, 0x%x, s3" % (sb + 2, ARG_BYTES[wn_]))
            p("    s_mov_b32 s%d, 0x20000" % (sb + 3))
        p("    s_mov_b32 s33, %d" % LDW)
    elif wmode == "single":
        LDW = ldw
        p("    s_lshl_b32 s3, s29, 8")
        p("    s_add_u32 s12, s40, s3")
        p("    s_addc_u32 s13, s41, 0")
        p("    s_sub_u32 s14, 0x%x, s3" % ARG_BYTES[Wn[0]])
        p("    s_mov_b32 s15, 0x20000")
        p("    s_add_u32 s16, s12, 128")
        p("    s_addc_u32 s17, s13, 0")
        p("    s_sub_u32 s18, s14, 128")
        p("    s_mov_b32 s19, 0x20000")
        p("    s_mov_b32 s33, %d" % LDW)
    else:
        owkv, nwkv = WS["wkv"]
        p("    s_lshl_b32 s3, s29, 8")
        p("    s_add_u32 s12, s40, s3")
        p("    s_addc_u32 s13, s41, 0")
        p("    s_sub_u32 s14, 0x%x, s3" % ARG_BYTES["wq"])
        p("    s_mov_b32 s33, 0x500")
        p("    s_cmp_lt_u32 s29, 5")
        p("    s_cbranch_scc1 L_%s_wq" % name)
        p("    s_add_u32 s12, s6, 0x%x" % owkv)
        p("    s_addc_u32 s13, s7, 0")
        p("    s_mov_b32 s14, 0x%x" % nwkv)
        p("    s_mov_b32 s33, 256")
        p("L_%s_wq:" % name)
        p("    s_mov_b32 s15, 0x20000")
        p("    s_add_u32 s16, s12, 128")
        p("    s_addc_u32 s17, s13, 0")
        p("    s_sub_u32 s18, s14, 128")
        p("    s_mov_b32 s19, 0x20000")
    p("    s_lshl_b32 s32, s33, 6")
    p("    s_mov_b32 s31, 0")
    p("    s_mul_i32 s34, s39, %d" % (XCH * 1024))
    p("    s_lshl_b32 s35, s39, 11")
    p("    s_add_u32 s35, s35, %d" % (BM * 128))

    vXoff = [v() for _ in range(XCH)]
    vWoff = [v(), v()]
    p("    v_lshrrev_b32 %s, 3, %s" % (vr(vt0), vr(vlane)))
    p("    v_lshrrev_b32 %s, 4, %s" % (vr(vt1), vr(vlane)))
    p("    v_and_b32 %s, 7, %s" % (vr(vt2), vr(vlane)))
    p("    s_mul_i32 s3, s39, %d" % (8 * XCH))
    for c in range(XCH):
        p("    v_add_u32 %s, %d, %s" % (vr(vt3), 4 * c, vr(vt1)))
        p("    v_and_b32 %s, 7, %s" % (vr(vt3), vr(vt3)))
        p("    v_xor_b32 %s, %s, %s" % (vr(vt3), vr(vt3), vr(vt2)))
        p("    v_add_u32 %s, s3, %s" % (vr(vXoff[c]), vr(vt0)))
        if c:
            p("    v_add_u32 %s, %d, %s" % (vr(vXoff[c]), 8 * c, vr(vXoff[c])))
        p("    v_mul_u32_u24 %s, 0x%x, %s" % (vr(vXoff[c]), lda, vr(vXoff[c])))
        p("    v_lshl_add_u32 %s, %s, 4, %s" % (vr(vXoff[c]), vr(vt3), vr(vXoff[c])))
        if c:
            p("    v_subrev_u32 %s, %d, %s" % (vr(vXoff[c]), 1024 * c, vr(vXoff[c])))
    p("    v_and_b32 %s, 1, %s" % (vr(vt3), vr(vt1)))
    p("    v_lshlrev_b32 %s, 2, %s" % (vr(vt3), vr(vt3)))
    p("    v_xor_b32 %s, %s, %s" % (vr(vt3), vr(vt3), vr(vt2)))
    p("    s_lshl_b32 s3, s39, 4")
    for c in range(2):
        p("    v_add_u32 %s, s3, %s" % (vr(vWoff[c]), vr(vt0)))
        if c:
            p("    v_add_u32 %s, 8, %s" % (vr(vWoff[c]), vr(vWoff[c])))
        p("    v_mul_lo_u32 %s, %s, s33" % (vr(vWoff[c]), vr(vWoff[c])))
        p("    v_lshl_add_u32 %s, %s, 4, %s" % (vr(vWoff[c]), vr(vt3), vr(vWoff[c])))
        if c:
            p("    v_subrev_u32 %s, %d, %s" % (vr(vWoff[c]), 1024, vr(vWoff[c])))

    vXa = [v() for _ in range(4)]
    vWa = v()
    p("    s_mul_i32 s3, s38, %d" % (32 * RT))
    p("    v_add_u32 %s, s3, %s" % (vr(vt0), vr(vL31)))
    p("    v_lshlrev_b32 %s, 7, %s" % (vr(vt0), vr(vt0)))
    p("    v_bfe_u32 %s, %s, 1, 3" % (vr(vt1), vr(vlane)))
    for kk in range(4):
        p("    v_add_u32 %s, %d, %s" % (vr(vt2), 2 * kk, vr(vH)))
        p("    v_xor_b32 %s, %s, %s" % (vr(vt2), vr(vt2), vr(vt1)))
        p("    v_lshl_add_u32 %s, %s, 4, %s" % (vr(vXa[kk]), vr(vt2), vr(vt0)))
    p("    v_lshrrev_b32 %s, 5, %s" % (vr(vt0), vr(vlane)))
    p("    v_lshlrev_b32 %s, 3, %s" % (vr(vt0), vr(vt0)))
    p("    v_bfe_u32 %s, %s, 2, 2" % (vr(vt1), vr(vlane)))
    p("    v_add_u32 %s, %s, %s" % (vr(vt0), vr(vt0), vr(vt1)))
    p("    v_lshlrev_b32 %s, 7, %s" % (vr(vWa), vr(vt0)))
    p("    v_bfe_u32 %s, %s, 4, 1" % (vr(vt0), vr(vlane)))
    p("    v_lshlrev_b32 %s, 1, %s" % (vr(vt0), vr(vt0)))
    p("    v_bfe_u32 %s, %s, 1, 1" % (vr(vt1), vr(vlane)))
    p("    v_add_u32 %s, %s, %s" % (vr(vt0), vr(vt0), vr(vt1)))
    p("    s_lshl_b32 s3, s37, 2")
    p("    v_add_u32 %s, s3, %s" % (vr(vt0), vr(vt0)))
    p("    v_bfe_u32 %s, %s, 3, 1" % (vr(vt1), vr(vlane)))
    p("    v_lshlrev_b32 %s, 2, %s" % (vr(vt1), vr(vt1)))
    p("    v_xor_b32 %s, %s, %s" % (vr(vt0), vr(vt0), vr(vt1)))
    p("    v_lshl_add_u32 %s, %s, 4, %s" % (vr(vWa), vr(vt0), vr(vWa)))
    p("    v_and_b32 %s, 1, %s" % (vr(vt0), vr(vlane)))
    p("    v_lshl_add_u32 %s, %s, 3, %s" % (vr(vWa), vr(vt0), vr(vWa)))
    p("    v_add_u32 %s, %d, %s" % (vr(vWa), BM * 128, vr(vWa)))

    def Wf(st, s): return fr[st] + 4 * s
    def Xf(st, t): return fr[st] + 8 + 4 * t

    def dma(inloop=False):
        if inloop and dbg == 1:
            return
        p("    s_add_u32 m0, s36, s34")
        for c in range(XCH):
            p("    buffer_load_dwordx4 %s, s[8:11], s30 offen offset:%d lds" % (vr(vXoff[c]), 1024 * c))
        p("    s_add_u32 m0, s36, s35")
        p("    buffer_load_dwordx4 %s, s[12:15], s31 offen lds" % vr(vWoff[0]))
        p("    buffer_load_dwordx4 %s, s[12:15], s31 offen offset:1024 lds" % vr(vWoff[1]))
        p("    s_add_u32 m0, m0, 0x2000")
        p("    buffer_load_dwordx4 %s, s[16:19], s31 offen lds" % vr(vWoff[0]))
        p("    buffer_load_dwordx4 %s, s[16:19], s31 offen offset:1024 lds" % vr(vWoff[1]))
        p("    s_add_u32 s30, s30, 128")
        p("    s_add_u32 s31, s31, s32")
        p("    s_add_u32 s36, s36, %d" % STAGE)
        p("    s_add_u32 s58, s58, 1")
        p("    s_cmp_eq_u32 s58, %d" % NS)
        p("    s_cselect_b32 s36, 0, s36")
        p("    s_cselect_b32 s58, 0, s58")

    def reads(kk, st):
        for t in range(RT):
            p("    ds_read_b128 %s, %s offset:%d" % (vr(Xf(st, t), 4), vr(vXa[kk]), 4096 * t))
        for s in range(2):
            for e in range(2):
                p("    ds_read_b64_tr_b16 %s, %s offset:%d" % (vr(Wf(st, s) + 2 * e, 2), vr(vWa), 8192 * s + (16 * kk + 4 * e) * 128))

    NRD = RT + 4

    p("    s_mov_b32 s36, 0")
    p("    s_mov_b32 s58, 0")
    for st in range(NS - 1):
        dma()
    p("    s_mov_b32 s59, 0")
    p("    s_mov_b32 s60, 0x%x" % ((-(NS - 1) * STAGE) & 0xffffffff))
    p("    s_mov_b32 s61, %d" % STAGE)
    p("    s_mov_b32 s49, 0")
    if ln:
        vNegM = [v(2, 2) for _ in range(RT)]
        vRs = [v(2, 2) for _ in range(RT)]
        p("    s_waitcnt vmcnt(%d)" % ((NS - 1) * DPS))
        p("    s_mov_b32 s51, 0xffff0000")
        p("    s_mov_b32 s52, 0x3acccccd")
        p("    s_mov_b32 s53, 0x3727c5ac")
        for t in range(RT):
            b = ST + 40 * t
            for i in range(1, 20):
                p("    v_pk_add_f32 %s, %s, %s" % (vr(b, 2), vr(b, 2), vr(b + 2 * i, 2)))
            p("    v_mul_f32 %s, s52, %s" % (vr(b), vr(b)))
            p("    v_mul_f32 %s, s52, %s" % (vr(b + 1), vr(b + 1)))
            p("    v_fma_f32 %s, -%s, %s, %s" % (vr(b + 1), vr(b), vr(b), vr(b + 1)))
            p("    v_max_f32 %s, 0, %s" % (vr(b + 1), vr(b + 1)))
            p("    v_cvt_pk_bf16_f32 %s, %s, %s" % (vr(b + 2), vr(b), vr(b + 1)))
            p("    v_lshlrev_b32 %s, 16, %s" % (vr(b), vr(b + 2)))
            p("    v_and_b32 %s, s51, %s" % (vr(b + 1), vr(b + 2)))
            p("    v_add_f32 %s, s53, %s" % (vr(b + 1), vr(b + 1)))
            p("    v_cvt_pk_bf16_f32 %s, %s, %s" % (vr(b + 1), vr(b + 1), vr(b + 1)))
            p("    v_lshlrev_b32 %s, 16, %s" % (vr(b + 1), vr(b + 1)))
            p("    v_sqrt_f32 %s, %s" % (vr(b + 1), vr(b + 1)))
            p("    v_cvt_pk_bf16_f32 %s, %s, %s" % (vr(b + 1), vr(b + 1), vr(b + 1)))
            p("    v_lshlrev_b32 %s, 16, %s" % (vr(b + 1), vr(b + 1)))
            p("    v_rcp_f32 %s, %s" % (vr(b + 2), vr(b + 1)))
            p("    v_fma_f32 %s, -%s, %s, 2.0" % (vr(b + 3), vr(b + 1), vr(b + 2)))
            p("    v_mul_f32 %s, %s, %s" % (vr(b + 2), vr(b + 2), vr(b + 3)))
            p("    v_sub_f32 %s, 0, %s" % (vr(vNegM[t]), vr(b)))
            p("    v_sub_f32 %s, 0, %s" % (vr(vNegM[t] + 1), vr(b)))
            p("    v_mov_b32 %s, %s" % (vr(vRs[t]), vr(b + 2)))
            p("    v_mov_b32 %s, %s" % (vr(vRs[t] + 1), vr(b + 2)))
    for s in range(2):
        for t in range(RT):
            for r in range(16):
                p("    v_mov_b32 %s, 0" % vr(acc[s][t] + r))
    if prof:
        p("    s_memtime s[66:67]")
        p("    s_waitcnt lgkmcnt(0)")
    p("L_%s_loop:" % name)
    p("    s_waitcnt vmcnt(%d)" % ((NS - 2) * DPS))
    p("    s_barrier")
    dma(True)
    if dbg != 2:
        reads(0, 0)
    for kk in range(4 if dbg != 2 else 0):
        st = kk & 1
        if kk < 3:
            reads(kk + 1, st ^ 1)
            p("    s_waitcnt lgkmcnt(%d)" % NRD)
        else:
            p("    s_waitcnt lgkmcnt(0)")
        for s in range(2):
            for t in range(RT):
                p("    v_mfma_f32_32x32x16_bf16 %s, %s, %s, %s" % (vr(acc[s][t], 16), vr(Wf(st, s), 4), vr(Xf(st, t), 4), vr(acc[s][t], 16)))
    p("    s_add_u32 s59, s59, 1")
    p("    s_cmp_eq_u32 s59, %d" % NS)
    p("    s_cselect_b32 s48, s60, s61")
    p("    s_cselect_b32 s59, 0, s59")
    for kk in range(4):
        p("    v_add_u32 %s, s48, %s" % (vr(vXa[kk]), vr(vXa[kk])))
    p("    v_add_u32 %s, s48, %s" % (vr(vWa), vr(vWa)))
    p("    s_add_u32 s49, s49, 1")
    p("    s_cmp_lt_u32 s49, %d" % NK)
    p("    s_cbranch_scc1 L_%s_loop" % name)
    p("    s_waitcnt vmcnt(0)")
    if prof:
        p("    s_memtime s[68:69]")
        p("    s_waitcnt lgkmcnt(0)")

    vRow = vt0
    p("    s_mul_i32 s3, s28, %d" % BM)
    p("    s_mul_i32 s50, s38, %d" % (32 * RT))
    p("    s_add_u32 s3, s3, s50")
    p("    v_add_u32 %s, s3, %s" % (vr(vRow), vr(vL31)))
    p("    s_mov_b32 s51, 0xffff0000")

    def ln_correct(csbufs, scale=None):
        CS = fr[0] if 2 * FS >= 32 else v(32, 4)
        idx = 0
        for s_ in range(2):
            wsn, colbase_shift, colbase_add = csbufs[s_]
            oC, nC = WS[wsn]
            emit_srd(p, 24, 6, oC, nC)
            p("    s_lshl_b32 s3, s29, %d" % colbase_shift)
            p("    s_lshl_b32 s50, s37, 7")
            p("    s_add_u32 s3, s3, s50")
            if colbase_add:
                p("    s_add_u32 s3, s3, %d" % colbase_add)
            p("    v_lshlrev_b32 %s, 4, %s" % (vr(vt2), vr(vH)))
            p("    v_add_u32 %s, s3, %s" % (vr(vt2), vr(vt2)))
            for i in range(4):
                p("    buffer_load_dwordx4 %s, %s, s[24:27], 0 offen offset:%d" % (vr(CS + idx, 4), vr(vt2), 32 * i))
                idx += 4
        p("    s_waitcnt vmcnt(0)")
        if scale is not None:
            p("    s_mov_b32 s54, %s" % f32hex(scale))
            for t in range(RT):
                p("    v_mul_f32 %s, s54, %s" % (vr(vRs[t]), vr(vRs[t])))
                p("    v_mul_f32 %s, s54, %s" % (vr(vRs[t] + 1), vr(vRs[t] + 1)))
        for s_ in range(2):
            for t in range(RT):
                for i in range(4):
                    a = acc[s_][t] + 4 * i
                    c = CS + 16 * s_ + 4 * i
                    p("    v_pk_fma_f32 %s, %s, %s, %s" % (vr(a, 2), vr(c, 2), vr(vNegM[t], 2), vr(a, 2)))
                    p("    v_pk_fma_f32 %s, %s, %s, %s" % (vr(a + 2, 2), vr(c + 2, 2), vr(vNegM[t], 2), vr(a + 2, 2)))
                    p("    v_pk_mul_f32 %s, %s, %s" % (vr(a, 2), vr(a, 2), vr(vRs[t], 2)))
                    p("    v_pk_mul_f32 %s, %s, %s" % (vr(a + 2, 2), vr(a + 2, 2), vr(vRs[t], 2)))

    if epi == "resid":
        kO, _, oO, nO = buf(out)
        kR, _, oR, nR = buf(resid)
        emit_srd(p, 20, 44 if kO == "arg" else 6, oO, nO)
        emit_srd(p, 24, 46 if kR == "arg" else 6, oR, nR)
        vOff = vt1
        p("    v_mul_u32_u24 %s, 0x500, %s" % (vr(vOff), vr(vRow)))
        p("    s_lshl_b32 s3, s29, 8")
        p("    s_lshl_b32 s50, s37, 6")
        p("    s_add_u32 s3, s3, s50")
        p("    v_add_u32 %s, s3, %s" % (vr(vOff), vr(vOff)))
        p("    v_lshl_add_u32 %s, %s, 3, %s" % (vr(vOff), vr(vH), vr(vOff)))
        p("    s_mov_b32 s52, 0x%x" % (32 * 1280))
        R = fr[0]
        assert fr[1] == fr[0] + FS
        nneed = 2 * RT * 4 * 2
        assert 2 * FS >= nneed or True
        idx = 0
        regs = {}
        if 2 * FS < nneed:
            R = v(nneed, 4)
        for s in range(2):
            for t in range(RT):
                for i in range(4):
                    regs[(s, t, i)] = R + idx
                    so = "s52" if t else "0"
                    p("    buffer_load_dwordx2 %s, %s, s[24:27], %s offen offset:%d" % (vr(R + idx, 2), vr(vOff), so, 128 * s + 16 * i))
                    idx += 2
        tA = v(2, 2); tB = v(2, 2); tC = v(2, 2)
        vOnes = v(); vSt = [v(2, 2) for _ in range(RT)]
        p("    v_mov_b32 %s, 0x3f803f80" % vr(vOnes))
        for t in range(RT):
            p("    v_mov_b32 %s, 0" % vr(vSt[t])); p("    v_mov_b32 %s, 0" % vr(vSt[t] + 1))
        first = True
        for s in range(2):
            for t in range(RT):
                for i in range(4):
                    a = acc[s][t] + 4 * i
                    r0 = regs[(s, t, i)]
                    p("    v_cvt_pk_bf16_f32 %s, %s, %s" % (vr(tA), vr(a), vr(a + 1)))
                    p("    v_cvt_pk_bf16_f32 %s, %s, %s" % (vr(tA + 1), vr(a + 2), vr(a + 3)))
                    p("    v_lshlrev_b32 %s, 16, %s" % (vr(a), vr(tA)))
                    p("    v_and_b32 %s, s51, %s" % (vr(a + 1), vr(tA)))
                    p("    v_lshlrev_b32 %s, 16, %s" % (vr(a + 2), vr(tA + 1)))
                    p("    v_and_b32 %s, s51, %s" % (vr(a + 3), vr(tA + 1)))
                    if first:
                        p("    s_waitcnt vmcnt(0)")
                        first = False
                    p("    v_lshlrev_b32 %s, 16, %s" % (vr(tB), vr(r0)))
                    p("    v_and_b32 %s, s51, %s" % (vr(tB + 1), vr(r0)))
                    p("    v_lshlrev_b32 %s, 16, %s" % (vr(tC), vr(r0 + 1)))
                    p("    v_and_b32 %s, s51, %s" % (vr(tC + 1), vr(r0 + 1)))
                    p("    v_pk_add_f32 %s, %s, %s" % (vr(a, 2), vr(a, 2), vr(tB, 2)))
                    p("    v_pk_add_f32 %s, %s, %s" % (vr(a + 2, 2), vr(a + 2, 2), vr(tC, 2)))
                    p("    v_cvt_pk_bf16_f32 %s, %s, %s" % (vr(r0), vr(a), vr(a + 1)))
                    p("    v_cvt_pk_bf16_f32 %s, %s, %s" % (vr(r0 + 1), vr(a + 2), vr(a + 3)))
                    so = "s52" if t else "0"
                    p("    buffer_store_dwordx2 %s, %s, s[20:23], %s offen offset:%d" % (vr(r0, 2), vr(vOff), so, 128 * s + 16 * i))
                    for q in range(2):
                        p("    v_dot2c_f32_bf16 %s, %s, %s" % (vr(vSt[t]), vr(r0 + q), vr(vOnes)))
                        p("    v_dot2c_f32_bf16 %s, %s, %s" % (vr(vSt[t] + 1), vr(r0 + q), vr(r0 + q)))
        if out != "out":
            oSt, nSt = WS["stats"]
            emit_srd(p, 24, 6, oSt, nSt)
            p("    v_mul_u32_u24 %s, 160, %s" % (vr(vOff), vr(vRow)))
            p("    s_lshl_b32 s3, s29, 5")
            p("    s_lshl_b32 s50, s37, 4")
            p("    s_add_u32 s3, s3, s50")
            p("    v_add_u32 %s, s3, %s" % (vr(vOff), vr(vOff)))
            p("    v_lshl_add_u32 %s, %s, 3, %s" % (vr(vOff), vr(vH), vr(vOff)))
            p("    s_mov_b32 s52, %d" % (32 * 160))
            for t in range(RT):
                p("    buffer_store_dwordx2 %s, %s, s[24:27], %s offen" % (vr(vSt[t], 2), vr(vOff), "s52" if t else "0"))
    elif epi == "geglu":
        if ln:
            ln_correct([("csg", 8, 0), ("csu", 8, 0)])
        oH, nH = WS["h"]
        emit_srd(p, 20, 6, oH, nH)
        vOff = vt1
        p("    v_mul_u32_u24 %s, %d, %s" % (vr(vOff), DF * 2, vr(vRow)))
        p("    s_lshl_b32 s3, s29, 7")
        p("    s_lshl_b32 s50, s37, 6")
        p("    s_add_u32 s3, s3, s50")
        p("    v_add_u32 %s, s3, %s" % (vr(vOff), vr(vOff)))
        p("    v_lshl_add_u32 %s, %s, 3, %s" % (vr(vOff), vr(vH), vr(vOff)))
        p("    s_mov_b32 s52, 0x%x" % (32 * DF * 2))
        k1 = -2.0 * math.sqrt(2.0 / math.pi) * 1.4426950408889634
        k2 = k1 * 0.044715
        p("    s_mov_b32 s54, %s" % f32hex(k2)); p("    s_mov_b32 s55, %s" % f32hex(k2))
        tA = v(2, 2); tB = v(2, 2); tW = v(2, 2); tK1 = v(2, 2)
        p("    v_mov_b32 %s, %s" % (vr(tK1), f32hex(k1))); p("    v_mov_b32 %s, %s" % (vr(tK1 + 1), f32hex(k1)))
        for t in range(RT):
            for i in range(4):
                g = acc[0][t] + 4 * i
                u = acc[1][t] + 4 * i
                p("    v_cvt_pk_bf16_f32 %s, %s, %s" % (vr(tA), vr(g), vr(g + 1)))
                p("    v_cvt_pk_bf16_f32 %s, %s, %s" % (vr(tA + 1), vr(g + 2), vr(g + 3)))
                p("    v_cvt_pk_bf16_f32 %s, %s, %s" % (vr(tB), vr(u), vr(u + 1)))
                p("    v_cvt_pk_bf16_f32 %s, %s, %s" % (vr(tB + 1), vr(u + 2), vr(u + 3)))
                p("    v_lshlrev_b32 %s, 16, %s" % (vr(g), vr(tA)))
                p("    v_and_b32 %s, s51, %s" % (vr(g + 1), vr(tA)))
                p("    v_lshlrev_b32 %s, 16, %s" % (vr(g + 2), vr(tA + 1)))
                p("    v_and_b32 %s, s51, %s" % (vr(g + 3), vr(tA + 1)))
                p("    v_lshlrev_b32 %s, 16, %s" % (vr(u), vr(tB)))
                p("    v_and_b32 %s, s51, %s" % (vr(u + 1), vr(tB)))
                p("    v_lshlrev_b32 %s, 16, %s" % (vr(u + 2), vr(tB + 1)))
                p("    v_and_b32 %s, s51, %s" % (vr(u + 3), vr(tB + 1)))
                for hh in range(2):
                    gg = g + 2 * hh
                    p("    v_pk_mul_f32 %s, %s, %s" % (vr(tW, 2), vr(gg, 2), vr(gg, 2)))
                    p("    v_pk_fma_f32 %s, %s, s[54:55], %s" % (vr(tW, 2), vr(tW, 2), vr(tK1, 2)))
                    p("    v_pk_mul_f32 %s, %s, %s" % (vr(tW, 2), vr(tW, 2), vr(gg, 2)))
                    p("    v_exp_f32 %s, %s" % (vr(tW), vr(tW)))
                    p("    v_exp_f32 %s, %s" % (vr(tW + 1), vr(tW + 1)))
                    p("    v_add_f32 %s, 1.0, %s" % (vr(tW), vr(tW)))
                    p("    v_add_f32 %s, 1.0, %s" % (vr(tW + 1), vr(tW + 1)))
                    p("    v_rcp_f32 %s, %s" % (vr(tW), vr(tW)))
                    p("    v_rcp_f32 %s, %s" % (vr(tW + 1), vr(tW + 1)))
                    p("    v_pk_mul_f32 %s, %s, %s" % (vr(gg, 2), vr(gg, 2), vr(tW, 2)))
                p("    v_cvt_pk_bf16_f32 %s, %s, %s" % (vr(tA), vr(g), vr(g + 1)))
                p("    v_cvt_pk_bf16_f32 %s, %s, %s" % (vr(tA + 1), vr(g + 2), vr(g + 3)))
                p("    v_lshlrev_b32 %s, 16, %s" % (vr(g), vr(tA)))
                p("    v_and_b32 %s, s51, %s" % (vr(g + 1), vr(tA)))
                p("    v_lshlrev_b32 %s, 16, %s" % (vr(g + 2), vr(tA + 1)))
                p("    v_and_b32 %s, s51, %s" % (vr(g + 3), vr(tA + 1)))
                p("    v_pk_mul_f32 %s, %s, %s" % (vr(g, 2), vr(g, 2), vr(u, 2)))
                p("    v_pk_mul_f32 %s, %s, %s" % (vr(g + 2, 2), vr(g + 2, 2), vr(u + 2, 2)))
                p("    v_cvt_pk_bf16_f32 %s, %s, %s" % (vr(u), vr(g), vr(g + 1)))
                p("    v_cvt_pk_bf16_f32 %s, %s, %s" % (vr(u + 1), vr(g + 2), vr(g + 3)))
                so = "s52" if t else "0"
                p("    buffer_store_dwordx2 %s, %s, s[20:23], %s offen offset:%d" % (vr(u, 2), vr(vOff), so, 16 * i))
    elif epi == "qkv":
        oQ, nQ = WS["q"]
        oK, nK = WS["kext"]
        oV, nV = WS["vt"]
        if ln:
            ln_correct([("csq", 9, 0), ("csq", 9, 256)])
        p("    s_cmp_ge_u32 s29, 5")
        p("    s_cbranch_scc1 L_%s_kv" % name)
        emit_srd(p, 20, 6, oQ, nQ)
        vOff = vt1
        p("    v_mul_u32_u24 %s, 0x500, %s" % (vr(vOff), vr(vRow)))
        p("    s_lshl_b32 s3, s29, 8")
        p("    s_lshl_b32 s50, s37, 6")
        p("    s_add_u32 s3, s3, s50")
        p("    v_add_u32 %s, s3, %s" % (vr(vOff), vr(vOff)))
        p("    v_lshl_add_u32 %s, %s, 3, %s" % (vr(vOff), vr(vH), vr(vOff)))
        p("    s_mov_b32 s52, 0x%x" % (32 * 1280))
        p("    s_mov_b32 s54, %s" % f32hex(CSCALE)); p("    s_mov_b32 s55, %s" % f32hex(CSCALE))
        for s in range(2):
            for t in range(RT):
                for i in range(4):
                    a = acc[s][t] + 4 * i
                    p("    v_pk_mul_f32 %s, %s, s[54:55]" % (vr(a, 2), vr(a, 2)))
                    p("    v_pk_mul_f32 %s, %s, s[54:55]" % (vr(a + 2, 2), vr(a + 2, 2)))
                    p("    v_cvt_pk_bf16_f32 %s, %s, %s" % (vr(a), vr(a), vr(a + 1)))
                    p("    v_cvt_pk_bf16_f32 %s, %s, %s" % (vr(a + 1), vr(a + 2), vr(a + 3)))
                    so = "s52" if t else "0"
                    p("    buffer_store_dwordx2 %s, %s, s[20:23], %s offen offset:%d" % (vr(a, 2), vr(vOff), so, 128 * s + 16 * i))
        p("    s_endpgm")
        p("L_%s_kv:" % name)
        p("    s_cmp_lg_u32 s37, 0")
        p("    s_cbranch_scc1 L_%s_end" % name)
        emit_srd(p, 20, 6, oK, nK)
        emit_srd(p, 24, 6, oV, nV)
        p("    s_mov_b32 s56, 0")
        p("    s_mov_b32 s57, -1")
        p("    v_mov_b32 %s, 0" % vr(vt3))
        vOne = v()
        p("    v_mov_b32 %s, 0x3f80" % vr(vOne))
        for t in range(RT):
            vOff = vt1
            p("    v_add_u32 %s, %d, %s" % (vr(vOff), 32 * t, vr(vRow)))
            p("    v_lshlrev_b32 %s, 6, %s" % (vr(vOff), vr(vOff)))
            p("    v_lshl_add_u32 %s, %s, 3, %s" % (vr(vOff), vr(vH), vr(vOff)))
            a = acc[0][t]
            for i in range(3):
                p("    v_cvt_pk_bf16_f32 %s, %s, %s" % (vr(a + 4 * i), vr(a + 4 * i), vr(a + 4 * i + 1)))
                p("    v_cvt_pk_bf16_f32 %s, %s, %s" % (vr(a + 4 * i + 1), vr(a + 4 * i + 2), vr(a + 4 * i + 3)))
            p("    v_cndmask_b32 %s, %s, %s, s[56:57]" % (vr(a + 8), vr(a + 8), vr(vOne)))
            p("    v_cndmask_b32 %s, %s, %s, s[56:57]" % (vr(a + 9), vr(a + 9), vr(vt3)))
            p("    v_mov_b32 %s, 0" % vr(a + 12)); p("    v_mov_b32 %s, 0" % vr(a + 13))
            for i in range(4):
                p("    buffer_store_dwordx2 %s, %s, s[20:23], 0 offen offset:%d" % (vr(a + 4 * i, 2), vr(vOff), 16 * i))
            vV = vt2
            p("    v_add_u32 %s, %d, %s" % (vr(vOff), 32 * t, vr(vRow)))
            p("    v_lshrrev_b32 %s, 5, %s" % (vr(vV), vr(vOff)))
            p("    v_lshlrev_b32 %s, 11, %s" % (vr(vV), vr(vV)))
            vp = v.next
            tA = v(2, 2)
            p("    v_and_b32 %s, 0x13, %s" % (vr(tA), vr(vOff)))
            p("    v_bfe_u32 %s, %s, 2, 1" % (vr(tA + 1), vr(vOff)))
            p("    v_lshl_add_u32 %s, %s, 3, %s" % (vr(tA), vr(tA + 1), vr(tA)))
            p("    v_bfe_u32 %s, %s, 3, 1" % (vr(tA + 1), vr(vOff)))
            p("    v_lshl_add_u32 %s, %s, 2, %s" % (vr(tA), vr(tA + 1), vr(tA)))
            p("    v_lshl_add_u32 %s, %s, 1, %s" % (vr(vV), vr(tA), vr(vV)))
            p("    v_lshl_add_u32 %s, %s, 8, %s" % (vr(vV), vr(vH), vr(vV)))
            b = acc[1][t]
            for i in range(3):
                p("    v_cvt_pk_bf16_f32 %s, %s, %s" % (vr(b + 4 * i), vr(b + 4 * i), vr(b + 4 * i + 1)))
                p("    v_cvt_pk_bf16_f32 %s, %s, %s" % (vr(b + 4 * i + 1), vr(b + 4 * i + 2), vr(b + 4 * i + 3)))
            p("    v_cndmask_b32 %s, %s, %s, s[56:57]" % (vr(b + 8), vr(b + 8), vr(vOne)))
            p("    v_cndmask_b32 %s, %s, %s, s[56:57]" % (vr(b + 9), vr(b + 9), vr(vt3)))
            p("    v_mov_b32 %s, 0" % vr(b + 12)); p("    v_mov_b32 %s, 0" % vr(b + 13))
            for i in range(4):
                for jj in range(2):
                    reg = b + 4 * i + jj
                    p("    buffer_store_short %s, %s, s[24:27], 0 offen offset:%d" % (vr(reg), vr(vV), (8 * i + 2 * jj) * 64))
                    p("    buffer_store_short_d16_hi %s, %s, s[24:27], 0 offen offset:%d" % (vr(reg), vr(vV), (8 * i + 2 * jj + 1) * 64))
            v.next = vp
    if prof:
        p("    s_waitcnt vmcnt(0)")
        p("    s_memtime s[70:71]")
        p("    s_waitcnt lgkmcnt(0)")
        oP, nP = WS["prof"]
        emit_srd(p, 72, 6, oP, nP)
        p("    s_lshl_b32 s3, s2, 5")
        for i in range(8):
            p("    v_mov_b32 v%d, s%d" % (i + 4, 64 + i))
        p("    v_mov_b32 v3, s3")
        p("    buffer_store_dwordx4 v[4:7], v3, s[72:75], 0 offen")
        p("    buffer_store_dwordx4 v[8:11], v3, s[72:75], 0 offen offset:16")
    p("L_%s_end:" % name)
    p("    s_endpgm")
    return Kernel(name, (T, 1, 1), (256, 1, 1), LDS, p.lines)
```

```python
from asmlib import Program, Alloc, vr, sr
from common import ARG, ARG_BYTES, WS, buf, emit_srd, Kernel, S, D, DF


def gen_prep(name):
    p = Program()
    NA, NB = 128, 10
    NCQ = 10
    NCG = 27
    NCU = 27
    NCKV = 1
    NW = NA + NB + NCQ + NCG + NCU + 2
    oS, nS = WS["stats"]
    p("    s_cmp_ge_u32 s2, %d" % NW)
    p("    s_cbranch_scc1 L_%s_end" % name)
    p("    s_load_dwordx2 s[4:5], s[0:1], %d" % ARG["x"])
    p("    s_load_dwordx2 s[6:7], s[0:1], %d" % ARG["ws"])
    p("    s_load_dwordx2 s[16:17], s[0:1], %d" % ARG["wk"])
    p("    s_load_dwordx2 s[18:19], s[0:1], %d" % ARG["wv"])
    p("    s_load_dwordx2 s[40:41], s[0:1], %d" % ARG["wq"])
    p("    s_load_dwordx2 s[42:43], s[0:1], %d" % ARG["wg"])
    p("    s_load_dwordx2 s[44:45], s[0:1], %d" % ARG["wu"])
    p("    s_waitcnt lgkmcnt(0)")
    p("    s_cmp_ge_u32 s2, %d" % NA)
    p("    s_cbranch_scc1 L_%s_notA" % name)
    emit_srd(p, 8, 4, 0, ARG_BYTES["x"])
    emit_srd(p, 12, 6, oS, nS)
    v = Alloc(1)
    vrow = v(); voff = v(); t0 = v(); t1 = v(); t3 = v(); ones = v()
    Dr = v(20, 4)
    O4 = v(4, 4)
    p("    v_lshrrev_b32 %s, 4, v0" % vr(vrow))
    p("    s_lshl_b32 s3, s2, 4")
    p("    v_add_u32 %s, s3, %s" % (vr(vrow), vr(vrow)))
    p("    v_mul_u32_u24 %s, 0x500, %s" % (vr(voff), vr(vrow)))
    p("    v_and_b32 %s, 15, v0" % vr(t3))
    p("    v_lshl_add_u32 %s, %s, 4, %s" % (vr(voff), vr(t3), vr(voff)))
    for i in range(5):
        p("    buffer_load_dwordx4 %s, %s, s[8:11], 0 offen offset:%d" % (vr(Dr + 4 * i, 4), vr(voff), 256 * i))
    p("    v_mov_b32 %s, 0x3f803f80" % vr(ones))
    p("    v_mov_b32 %s, 0" % vr(t0))
    p("    v_mov_b32 %s, 0" % vr(t1))
    p("    s_waitcnt vmcnt(0)")
    for j in range(20):
        p("    v_dot2c_f32_bf16 %s, %s, %s" % (vr(t0), vr(Dr + j), vr(ones)))
        p("    v_dot2c_f32_bf16 %s, %s, %s" % (vr(t1), vr(Dr + j), vr(Dr + j)))
    for r in (t0, t1):
        for sh in (8, 4, 2, 1):
            p("    v_add_f32_dpp %s, %s, %s row_ror:%d row_mask:0xf bank_mask:0xf" % (vr(voff), vr(r), vr(r), sh))
            p("    v_mov_b32 %s, %s" % (vr(r), vr(voff)))
    p("    v_cmp_eq_u32 vcc, 0, %s" % vr(t3))
    p("    v_cndmask_b32 %s, 0, %s, vcc" % (vr(O4), vr(t0)))
    p("    v_cndmask_b32 %s, 0, %s, vcc" % (vr(O4 + 1), vr(t1)))
    p("    v_mov_b32 %s, 0" % vr(O4 + 2))
    p("    v_mov_b32 %s, 0" % vr(O4 + 3))
    p("    v_mul_u32_u24 %s, 160, %s" % (vr(voff), vr(vrow)))
    p("    v_lshl_add_u32 %s, %s, 4, %s" % (vr(voff), vr(t3), vr(voff)))
    p("    v_cmp_gt_u32 vcc, 10, %s" % vr(t3))
    p("    v_mov_b32 %s, 0x7fffffff" % vr(t0))
    p("    v_cndmask_b32 %s, %s, %s, vcc" % (vr(voff), vr(t0), vr(voff)))
    p("    buffer_store_dwordx4 %s, %s, s[12:15], 0 offen" % (vr(O4, 4), vr(voff)))
    p("    s_endpgm")

    p("L_%s_notA:" % name)
    p("    s_cmp_ge_u32 s2, %d" % (NA + NB))
    p("    s_cbranch_scc1 L_%s_notB" % name)
    owkv, nwkv = WS["wkv"]
    emit_srd(p, 8, 16, 0, ARG_BYTES["wk"])
    emit_srd(p, 12, 18, 0, ARG_BYTES["wv"])
    emit_srd(p, 24, 6, owkv, nwkv)
    v = Alloc(1)
    kr = v(); part = v(); a = v()
    A = v(10, 2); B = v(10, 2); R = v(16, 4)
    p("    s_sub_u32 s3, s2, %d" % NA)
    p("    s_lshl_b32 s3, s3, 6")
    p("    v_lshrrev_b32 %s, 2, v0" % vr(kr))
    p("    v_add_u32 %s, s3, %s" % (vr(kr), vr(kr)))
    p("    v_and_b32 %s, 3, v0" % vr(part))
    p("    v_mul_u32_u24 %s, 40, %s" % (vr(a), vr(kr)))
    for i in range(5):
        p("    buffer_load_dwordx2 %s, %s, s[8:11], 0 offen offset:%d" % (vr(A + 2 * i, 2), vr(a), 8 * i))
        p("    buffer_load_dwordx2 %s, %s, s[12:15], 0 offen offset:%d" % (vr(B + 2 * i, 2), vr(a), 8 * i))
    p("    v_cmp_eq_u32 vcc, 2, %s" % vr(part))
    p("    v_and_b32 %s, 1, %s" % (vr(a), vr(part)))
    p("    v_cmp_eq_u32 s[28:29], 1, %s" % vr(a))
    p("    s_waitcnt vmcnt(0)")
    for i in range(10):
        p("    v_cndmask_b32 %s, %s, %s, vcc" % (vr(R + i), vr(A + i), vr(B + i)))
        p("    v_cndmask_b32 %s, %s, 0, s[28:29]" % (vr(R + i), vr(R + i)))
    for i in range(10, 16):
        p("    v_mov_b32 %s, 0" % vr(R + i))
    p("    v_lshlrev_b32 %s, 8, %s" % (vr(a), vr(kr)))
    p("    v_lshl_add_u32 %s, %s, 6, %s" % (vr(a), vr(part), vr(a)))
    for i in range(4):
        p("    buffer_store_dwordx4 %s, %s, s[24:27], 0 offen offset:%d" % (vr(R + 4 * i, 4), vr(a), 16 * i))
    p("    s_endpgm")

    p("L_%s_notB:" % name)
    def colsum(tag, sptr, total_bytes, ld, wsname, dstcol0, first_wg, nwg, narrow=False, ncols_valid=64, dst_extra=0):
        p("    s_cmp_ge_u32 s2, %d" % (first_wg + nwg))
        p("    s_cbranch_scc1 L_%s_not%s" % (name, tag))
        oC, nC = WS[wsname]
        emit_srd(p, 8, sptr, 0, total_bytes)
        emit_srd(p, 12, 6, oC, nC)
        v = Alloc(1)
        cc = v(); rg = v(); a = v(); ones = v()
        L = v(4, 4); acc = v(8, 4); t2 = v(2, 2)
        p("    s_sub_u32 s3, s2, %d" % first_wg)
        p("    v_and_b32 %s, 7, v0" % vr(cc))
        p("    v_lshrrev_b32 %s, 3, v0" % vr(rg))
        p("    v_mul_u32_u24 %s, %d, %s" % (vr(a), 20 * ld, vr(rg)))
        p("    v_lshl_add_u32 %s, %s, 4, %s" % (vr(a), vr(cc), vr(a)))
        p("    s_lshl_b32 s28, s3, 7")
        p("    v_add_u32 %s, s28, %s" % (vr(a), vr(a)))
        for i in range(8):
            p("    v_mov_b32 %s, 0" % vr(acc + i))
        p("    s_mov_b32 s29, 0xffff0000")
        LL = v(80, 4)
        for r in range(20):
            if narrow:
                p("    buffer_load_dwordx2 %s, %s, s[8:11], 0 offen offset:%d" % (vr(LL + 4 * r, 2), vr(a), 0)) if False else None
                p("    s_mov_b32 s30, %d" % (ld * r))
                p("    buffer_load_dwordx2 %s, %s, s[8:11], s30 offen" % (vr(LL + 4 * r, 2), vr(a)))
                p("    buffer_load_dwordx2 %s, %s, s[8:11], s30 offen offset:8" % (vr(LL + 4 * r + 2, 2), vr(a)))
            else:
                p("    s_mov_b32 s30, %d" % (ld * r))
                p("    buffer_load_dwordx4 %s, %s, s[8:11], s30 offen" % (vr(LL + 4 * r, 4), vr(a)))
        for r in range(20):
            p("    s_waitcnt vmcnt(%d)" % ((19 - r) * (2 if narrow else 1)))
            for i in range(4):
                p("    v_lshlrev_b32 %s, 16, %s" % (vr(t2), vr(LL + 4 * r + i)))
                p("    v_and_b32 %s, s29, %s" % (vr(t2 + 1), vr(LL + 4 * r + i)))
                p("    v_pk_add_f32 %s, %s, %s" % (vr(acc + 2 * i, 2), vr(acc + 2 * i, 2), vr(t2, 2)))
        p("    v_lshlrev_b32 %s, 8, %s" % (vr(a), vr(rg)))
        p("    v_lshl_add_u32 %s, %s, 5, %s" % (vr(a), vr(cc), vr(a)))
        p("    ds_write_b128 %s, %s" % (vr(a), vr(acc, 4)))
        p("    ds_write_b128 %s, %s offset:16" % (vr(a), vr(acc + 4, 4)))
        p("    s_waitcnt lgkmcnt(0)")
        p("    s_barrier")
        p("    v_cmp_gt_u32 vcc, 64, v0")
        p("    s_and_saveexec_b64 s[32:33], vcc")
        p("    s_cbranch_execz L_%s_end" % name)
        p("    v_lshlrev_b32 %s, 2, v0" % vr(a))
        p("    v_mov_b32 %s, 0" % vr(acc))
        for r in range(32):
            p("    ds_read_b32 %s, %s offset:%d" % (vr(L + (r & 3)), vr(a), 256 * r))
            if (r & 3) == 3:
                p("    s_waitcnt lgkmcnt(0)")
                for q in range(4):
                    p("    v_add_f32 %s, %s, %s" % (vr(acc), vr(acc), vr(L + q)))
        p("    s_lshl_b32 s28, s3, 8")
        p("    v_add_u32 %s, s28, %s" % (vr(a), vr(a)))
        if dstcol0:
            p("    v_add_u32 %s, %d, %s" % (vr(a), dstcol0 * 4, vr(a)))
        if ncols_valid < 64:
            p("    v_cmp_gt_u32 vcc, %d, v0" % ncols_valid)
            p("    v_cndmask_b32 %s, 0, %s, vcc" % (vr(acc), vr(acc)))
        p("    buffer_store_dword %s, %s, s[12:15], 0 offen" % (vr(acc), vr(a)))
        p("    s_endpgm")
        p("L_%s_not%s:" % (name, tag))

    f = NA + NB
    colsum("q", 40, ARG_BYTES["wq"], 1280, "csq", 0, f, NCQ); f += NCQ
    colsum("g", 42, ARG_BYTES["wg"], 3456, "csg", 0, f, NCG); f += NCG
    colsum("u", 44, ARG_BYTES["wu"], 3456, "csu", 0, f, NCU); f += NCU
    colsum("k", 16, ARG_BYTES["wk"], 40, "csq", 640, f, 1, narrow=True, ncols_valid=20); f += 1
    colsum("v", 18, ARG_BYTES["wv"], 40, "csq", 704, f, 1, narrow=True, ncols_valid=20); f += 1
    p("L_%s_end:" % name)
    p("    s_endpgm")
    return Kernel(name, (f, 1, 1), (256, 1, 1), 32 * 256, p.lines)
```

```python
import sys
from common import build_file, WS, WS_TOTAL
import k_ln, k_gemm, k_attn, k_prep

NAME = "interleave_layers__grouped_kv_mqa__glu_gated_geglu__prompt"
HEADER = open("cdna_kernels/%s.s.ref" % NAME).read().split("\n")
hdr = [l for l in HEADER if l.startswith(";") and "@launch" not in l]

CFG = dict(qkv_rt=1, qkv_ns=3, wo_rt=1, wo_ns=3, gu_rt=2, gu_ns=2, dn_rt=1, dn_ns=5)

def main(path, verbose=False, cfg=CFG):
    kernels = []
    launches = []
    def add(k):
        kernels.append(k)
        launches.append((k.name, k.grid, k.block, k.lds))
    G = k_gemm.gen_gemm
    xs = ["x", "x1", "x2", "x3", "out"]
    add(k_prep.gen_prep("prep_kernel"))
    for L in range(2):
        a, b, c = xs[2 * L], xs[2 * L + 1], xs[2 * L + 2]
        n = L + 1
        add(G("qkv%d_kernel" % n, a, 1280, 640, cfg["qkv_rt"], "qkv", None, 6, "qkv", NS=cfg["qkv_ns"], ln=True, dbg=cfg.get("qkv_dbg", 0), prof=(cfg.get("prof", 0) == 3 and L == 0)))
        add(k_attn.gen_attn("attn%d_kernel" % n))
        add(G("wo%d_kernel" % n, "o", 1280, 640, cfg["wo_rt"], "single", ("wo",), 5, "resid", out=b, resid=a, ldw=1280, NS=cfg["wo_ns"]))
        add(G("gu%d_kernel" % n, b, 1280, 640, cfg["gu_rt"], "pair", ("wg", "wu"), 27, "geglu", ldw=3456, NS=cfg["gu_ns"], ln=True, dbg=cfg.get("gu_dbg", 0), prof=(cfg.get("prof", 0) == 1 and L == 0)))
        add(G("dn%d_kernel" % n, "h", 3456, 1728, cfg["dn_rt"], "single", ("wd",), 5, "resid", out=c, resid=b, ldw=1280, NS=cfg["dn_ns"], dbg=cfg.get("dn_dbg", 0), prof=(cfg.get("prof", 0) == 2 and L == 0)))
    text, stats = build_file(kernels, launches, hdr, verbose)
    open(path, "w").write(text)
    for s in stats:
        print("%-14s vgpr %3d sgpr %3d nops %3d lines %d" % s)

if __name__ == "__main__":
    cfg = dict(CFG)
    for a in sys.argv[2:]:
        if "=" in a:
            k, v = a.split("="); cfg[k] = int(v)
    main(sys.argv[1] if len(sys.argv) > 1 else "cdna_kernels/%s.s" % NAME, "-v" in sys.argv, cfg)
```

```python
from asmlib import Program, Alloc, vr, sr
from common import ARG, ARG_BYTES, WS, buf, emit_srd, Kernel, S, D, DF
import math

CSCALE = 1.4426950408889634 * 20 ** -0.5


def f32hex(x):
    import struct
    return "0x%08x" % struct.unpack("<I", struct.pack("<f", x))[0]


def gen_gemm(name, A, lda, K, RT, wmode, Wn, NT, epi, out=None, resid=None, ldw=None, NS=4, ln=False, dbg=0, prof=False):
    p = Program()
    BM = 64 * RT
    MT = S // BM
    lgMT = int(math.log2(MT))
    T = MT * NT
    assert T % 8 == 0
    NK = K // 64
    XCH = BM // 64
    STAGE = BM * 128 + 16384
    LDS = NS * STAGE
    DPS = XCH + 2
    kA, _, oA, nA = buf(A)

    p("    s_cmp_ge_u32 s2, %d" % T)
    p("    s_cbranch_scc1 L_%s_end" % name)
    p("    s_load_dwordx2 s[4:5], s[0:1], %d" % (ARG[A] if kA == "arg" else ARG["ws"]))
    p("    s_load_dwordx2 s[6:7], s[0:1], %d" % ARG["ws"])
    if wmode == "pair":
        p("    s_load_dwordx2 s[40:41], s[0:1], %d" % ARG[Wn[0]])
        p("    s_load_dwordx2 s[42:43], s[0:1], %d" % ARG[Wn[1]])
    elif wmode == "single":
        p("    s_load_dwordx2 s[40:41], s[0:1], %d" % ARG[Wn[0]])
    else:
        p("    s_load_dwordx2 s[40:41], s[0:1], %d" % ARG["wq"])
    if epi == "resid":
        kO, _, oO, nO = buf(out)
        kR, _, oR, nR = buf(resid)
        if kO == "arg":
            p("    s_load_dwordx2 s[44:45], s[0:1], %d" % ARG[out])
        if kR == "arg":
            p("    s_load_dwordx2 s[46:47], s[0:1], %d" % ARG[resid])
    if prof:
        p("    s_memtime s[64:65]")
    p("    s_and_b32 s28, s2, 7")
    p("    s_mul_i32 s28, s28, %d" % (T // 8))
    p("    s_lshr_b32 s29, s2, 3")
    p("    s_add_u32 s28, s28, s29")
    p("    s_lshr_b32 s29, s28, %d" % lgMT)
    p("    s_and_b32 s28, s28, %d" % (MT - 1))
    v = Alloc(1)
    vt0 = v(); vt1 = v(); vt2 = v(); vt3 = v()
    vlane = v(); vL31 = v(); vH = v()
    v.next = (v.next + 3) // 4 * 4
    acc = [[v(16, 4) for _ in range(RT)] for _ in range(2)]
    FS = 8 + 4 * RT
    fr = [v(FS, 4), v(FS, 4)]
    assert fr[1] + FS - acc[0][0] >= 40 * RT
    p("    v_lshrrev_b32 %s, 6, v0" % vr(vt0))
    p("    v_and_b32 %s, 63, v0" % vr(vlane))
    p("    v_readfirstlane_b32 s39, %s" % vr(vt0))
    p("    v_and_b32 %s, 31, v0" % vr(vL31))
    p("    v_lshrrev_b32 %s, 5, %s" % (vr(vH), vr(vlane)))
    p("    s_waitcnt lgkmcnt(0)")
    p("    s_and_b32 s62, s39, 3")
    p("    s_lshr_b32 s63, s39, 2")
    p("    s_and_b32 s37, s62, 1")
    p("    s_lshr_b32 s38, s62, 1")
    if ln:
        oSt, nSt = WS["stats"]
        emit_srd(p, 24, 6, oSt, nSt)
        p("    s_mul_i32 s3, s28, %d" % BM)
        p("    s_mul_i32 s50, s38, %d" % (32 * RT))
        p("    s_add_u32 s3, s3, s50")
        p("    v_add_u32 %s, s3, %s" % (vr(vt1), vr(vL31)))
        p("    v_mul_u32_u24 %s, 160, %s" % (vr(vt1), vr(vt1)))
        p("    s_mov_b32 s50, %d" % (32 * 160))
        ST = acc[0][0]
        for t in range(RT):
            for i in range(10):
                p("    buffer_load_dwordx4 %s, %s, s[24:27], %s offen offset:%d" % (vr(ST + 40 * t + 4 * i, 4), vr(vt1), "s50" if t else "0", 16 * i))
    emit_srd(p, 8, 4, oA, nA)
    p("    s_mul_i32 s30, s28, %d" % (BM * lda))
    if wmode == "pair":
        LDW = ldw
        p("    s_lshl_b32 s3, s29, 7")
        for sb, sp_, wn_ in ((12, 40, Wn[0]), (16, 42, Wn[1])):
            p("    s_add_u32 s%d, s%d, s3" % (sb, sp_))
            p("    s_addc_u32 s%d, s%d, 0" % (sb + 1, sp_ + 1))
            p("    s_sub_u32 s%d, 0x%x, s3" % (sb + 2, ARG_BYTES[wn_]))
            p("    s_mov_b32 s%d, 0x20000" % (sb + 3))
        p("    s_mov_b32 s33, %d" % LDW)
    elif wmode == "single":
        LDW = ldw
        p("    s_lshl_b32 s3, s29, 8")
        p("    s_add_u32 s12, s40, s3")
        p("    s_addc_u32 s13, s41, 0")
        p("    s_sub_u32 s14, 0x%x, s3" % ARG_BYTES[Wn[0]])
        p("    s_mov_b32 s15, 0x20000")
        p("    s_add_u32 s16, s12, 128")
        p("    s_addc_u32 s17, s13, 0")
        p("    s_sub_u32 s18, s14, 128")
        p("    s_mov_b32 s19, 0x20000")
        p("    s_mov_b32 s33, %d" % LDW)
    else:
        owkv, nwkv = WS["wkv"]
        p("    s_lshl_b32 s3, s29, 8")
        p("    s_add_u32 s12, s40, s3")
        p("    s_addc_u32 s13, s41, 0")
        p("    s_sub_u32 s14, 0x%x, s3" % ARG_BYTES["wq"])
        p("    s_mov_b32 s33, 0x500")
        p("    s_cmp_lt_u32 s29, 5")
        p("    s_cbranch_scc1 L_%s_wq" % name)
        p("    s_add_u32 s12, s6, 0x%x" % owkv)
        p("    s_addc_u32 s13, s7, 0")
        p("    s_mov_b32 s14, 0x%x" % nwkv)
        p("    s_mov_b32 s33, 256")
        p("L_%s_wq:" % name)
        p("    s_mov_b32 s15, 0x20000")
        p("    s_add_u32 s16, s12, 128")
        p("    s_addc_u32 s17, s13, 0")
        p("    s_sub_u32 s18, s14, 128")
        p("    s_mov_b32 s19, 0x20000")
    p("    s_cmp_eq_u32 s63, 0")
    p("    s_cselect_b32 s64, s12, s16")
    p("    s_cselect_b32 s65, s13, s17")
    p("    s_cselect_b32 s66, s14, s18")
    p("    s_mov_b32 s67, 0x20000")
    p("    s_lshl_b32 s32, s33, 6")
    p("    s_mov_b32 s31, 0")
    p("    s_mul_i32 s34, s39, %d" % (XCH * 1024))
    p("    s_lshl_b32 s35, s62, 11")
    p("    s_lshl_b32 s3, s63, 13")
    p("    s_add_u32 s35, s35, s3")
    p("    s_add_u32 s35, s35, %d" % (BM * 128))

    vXoff = [v() for _ in range(XCH)]
    vWoff = [v(), v()]
    p("    v_lshrrev_b32 %s, 3, %s" % (vr(vt0), vr(vlane)))
    p("    v_lshrrev_b32 %s, 4, %s" % (vr(vt1), vr(vlane)))
    p("    v_and_b32 %s, 7, %s" % (vr(vt2), vr(vlane)))
    p("    s_mul_i32 s3, s39, %d" % (8 * XCH))
    for c in range(XCH):
        p("    s_mul_i32 s50, s39, %d" % (4 * XCH))
        p("    v_add_u32 %s, %d, %s" % (vr(vt3), 4 * c, vr(vt1)))
        p("    v_add_u32 %s, s50, %s" % (vr(vt3), vr(vt3)))
        p("    v_and_b32 %s, 7, %s" % (vr(vt3), vr(vt3)))
        p("    v_xor_b32 %s, %s, %s" % (vr(vt3), vr(vt3), vr(vt2)))
        p("    v_add_u32 %s, s3, %s" % (vr(vXoff[c]), vr(vt0)))
        if c:
            p("    v_add_u32 %s, %d, %s" % (vr(vXoff[c]), 8 * c, vr(vXoff[c])))
        p("    v_mul_u32_u24 %s, 0x%x, %s" % (vr(vXoff[c]), lda, vr(vXoff[c])))
        p("    v_lshl_add_u32 %s, %s, 4, %s" % (vr(vXoff[c]), vr(vt3), vr(vXoff[c])))
        if c:
            p("    v_subrev_u32 %s, %d, %s" % (vr(vXoff[c]), 1024 * c, vr(vXoff[c])))
    p("    v_and_b32 %s, 1, %s" % (vr(vt3), vr(vt1)))
    p("    v_lshlrev_b32 %s, 2, %s" % (vr(vt3), vr(vt3)))
    p("    v_xor_b32 %s, %s, %s" % (vr(vt3), vr(vt3), vr(vt2)))
    p("    s_lshl_b32 s3, s62, 4")
    for c in range(2):
        p("    v_add_u32 %s, s3, %s" % (vr(vWoff[c]), vr(vt0)))
        if c:
            p("    v_add_u32 %s, 8, %s" % (vr(vWoff[c]), vr(vWoff[c])))
        p("    v_mul_lo_u32 %s, %s, s33" % (vr(vWoff[c]), vr(vWoff[c])))
        p("    v_lshl_add_u32 %s, %s, 4, %s" % (vr(vWoff[c]), vr(vt3), vr(vWoff[c])))
        if c:
            p("    v_subrev_u32 %s, %d, %s" % (vr(vWoff[c]), 1024, vr(vWoff[c])))

    vXa = [v() for _ in range(2)]
    vWa = v()
    p("    s_mul_i32 s3, s38, %d" % (32 * RT))
    p("    v_add_u32 %s, s3, %s" % (vr(vt0), vr(vL31)))
    p("    v_lshlrev_b32 %s, 7, %s" % (vr(vt0), vr(vt0)))
    p("    v_bfe_u32 %s, %s, 1, 3" % (vr(vt1), vr(vlane)))
    p("    s_lshl_b32 s3, s63, 2")
    for kk in range(2):
        p("    v_add_u32 %s, %d, %s" % (vr(vt2), 2 * kk, vr(vH)))
        p("    v_add_u32 %s, s3, %s" % (vr(vt2), vr(vt2)))
        p("    v_xor_b32 %s, %s, %s" % (vr(vt2), vr(vt2), vr(vt1)))
        p("    v_lshl_add_u32 %s, %s, 4, %s" % (vr(vXa[kk]), vr(vt2), vr(vt0)))
    p("    v_lshrrev_b32 %s, 5, %s" % (vr(vt0), vr(vlane)))
    p("    v_lshlrev_b32 %s, 3, %s" % (vr(vt0), vr(vt0)))
    p("    v_bfe_u32 %s, %s, 2, 2" % (vr(vt1), vr(vlane)))
    p("    v_add_u32 %s, %s, %s" % (vr(vt0), vr(vt0), vr(vt1)))
    p("    v_lshlrev_b32 %s, 7, %s" % (vr(vWa), vr(vt0)))
    p("    v_bfe_u32 %s, %s, 4, 1" % (vr(vt0), vr(vlane)))
    p("    v_lshlrev_b32 %s, 1, %s" % (vr(vt0), vr(vt0)))
    p("    v_bfe_u32 %s, %s, 1, 1" % (vr(vt1), vr(vlane)))
    p("    v_add_u32 %s, %s, %s" % (vr(vt0), vr(vt0), vr(vt1)))
    p("    s_lshl_b32 s3, s37, 2")
    p("    v_add_u32 %s, s3, %s" % (vr(vt0), vr(vt0)))
    p("    v_bfe_u32 %s, %s, 3, 1" % (vr(vt1), vr(vlane)))
    p("    v_lshlrev_b32 %s, 2, %s" % (vr(vt1), vr(vt1)))
    p("    v_xor_b32 %s, %s, %s" % (vr(vt0), vr(vt0), vr(vt1)))
    p("    v_lshl_add_u32 %s, %s, 4, %s" % (vr(vWa), vr(vt0), vr(vWa)))
    p("    v_and_b32 %s, 1, %s" % (vr(vt0), vr(vlane)))
    p("    v_lshl_add_u32 %s, %s, 3, %s" % (vr(vWa), vr(vt0), vr(vWa)))
    p("    v_add_u32 %s, %d, %s" % (vr(vWa), BM * 128, vr(vWa)))
    p("    s_lshl_b32 s3, s63, 12")
    p("    v_add_u32 %s, s3, %s" % (vr(vWa), vr(vWa)))

    def Wf(st, s): return fr[st] + 4 * s
    def Xf(st, t): return fr[st] + 8 + 4 * t

    def dma(inloop=False):
        if inloop and dbg == 1:
            return
        p("    s_add_u32 m0, s36, s34")
        for c in range(XCH):
            p("    buffer_load_dwordx4 %s, s[8:11], s30 offen offset:%d lds" % (vr(vXoff[c]), 1024 * c))
        p("    s_add_u32 m0, s36, s35")
        p("    buffer_load_dwordx4 %s, s[64:67], s31 offen lds" % vr(vWoff[0]))
        p("    buffer_load_dwordx4 %s, s[64:67], s31 offen offset:1024 lds" % vr(vWoff[1]))
        p("    s_add_u32 s30, s30, 128")
        p("    s_add_u32 s31, s31, s32")
        p("    s_add_u32 s36, s36, %d" % STAGE)
        p("    s_add_u32 s58, s58, 1")
        p("    s_cmp_eq_u32 s58, %d" % NS)
        p("    s_cselect_b32 s36, 0, s36")
        p("    s_cselect_b32 s58, 0, s58")

    def reads(kk, st):
        for t in range(RT):
            p("    ds_read_b128 %s, %s offset:%d" % (vr(Xf(st, t), 4), vr(vXa[kk]), 4096 * t))
        for s in range(2):
            for e in range(2):
                p("    ds_read_b64_tr_b16 %s, %s offset:%d" % (vr(Wf(st, s) + 2 * e, 2), vr(vWa), 8192 * s + (16 * kk + 4 * e) * 128))

    NRD = RT + 4

    p("    s_mov_b32 s36, 0")
    p("    s_mov_b32 s58, 0")
    for st in range(NS - 1):
        dma()
    p("    s_mov_b32 s59, 0")
    p("    s_mov_b32 s60, 0x%x" % ((-(NS - 1) * STAGE) & 0xffffffff))
    p("    s_mov_b32 s61, %d" % STAGE)
    p("    s_mov_b32 s49, 0")
    if ln:
        vNegM = [v(2, 2) for _ in range(RT)]
        vRs = [v(2, 2) for _ in range(RT)]
        p("    s_waitcnt vmcnt(%d)" % ((NS - 1) * DPS))
        p("    s_mov_b32 s51, 0xffff0000")
        p("    s_mov_b32 s52, 0x3acccccd")
        p("    s_mov_b32 s53, 0x3727c5ac")
        for t in range(RT):
            b = ST + 40 * t
            for i in range(1, 20):
                p("    v_pk_add_f32 %s, %s, %s" % (vr(b, 2), vr(b, 2), vr(b + 2 * i, 2)))
            p("    v_mul_f32 %s, s52, %s" % (vr(b), vr(b)))
            p("    v_mul_f32 %s, s52, %s" % (vr(b + 1), vr(b + 1)))
            p("    v_fma_f32 %s, -%s, %s, %s" % (vr(b + 1), vr(b), vr(b), vr(b + 1)))
            p("    v_max_f32 %s, 0, %s" % (vr(b + 1), vr(b + 1)))
            p("    v_cvt_pk_bf16_f32 %s, %s, %s" % (vr(b + 2), vr(b), vr(b + 1)))
            p("    v_lshlrev_b32 %s, 16, %s" % (vr(b), vr(b + 2)))
            p("    v_and_b32 %s, s51, %s" % (vr(b + 1), vr(b + 2)))
            p("    v_add_f32 %s, s53, %s" % (vr(b + 1), vr(b + 1)))
            p("    v_cvt_pk_bf16_f32 %s, %s, %s" % (vr(b + 1), vr(b + 1), vr(b + 1)))
            p("    v_lshlrev_b32 %s, 16, %s" % (vr(b + 1), vr(b + 1)))
            p("    v_sqrt_f32 %s, %s" % (vr(b + 1), vr(b + 1)))
            p("    v_cvt_pk_bf16_f32 %s, %s, %s" % (vr(b + 1), vr(b + 1), vr(b + 1)))
            p("    v_lshlrev_b32 %s, 16, %s" % (vr(b + 1), vr(b + 1)))
            p("    v_rcp_f32 %s, %s" % (vr(b + 2), vr(b + 1)))
            p("    v_fma_f32 %s, -%s, %s, 2.0" % (vr(b + 3), vr(b + 1), vr(b + 2)))
            p("    v_mul_f32 %s, %s, %s" % (vr(b + 2), vr(b + 2), vr(b + 3)))
            p("    v_sub_f32 %s, 0, %s" % (vr(vNegM[t]), vr(b)))
            p("    v_sub_f32 %s, 0, %s" % (vr(vNegM[t] + 1), vr(b)))
            p("    v_mov_b32 %s, %s" % (vr(vRs[t]), vr(b + 2)))
            p("    v_mov_b32 %s, %s" % (vr(vRs[t] + 1), vr(b + 2)))
    for s in range(2):
        for t in range(RT):
            for r in range(16):
                p("    v_mov_b32 %s, 0" % vr(acc[s][t] + r))
    if prof:
        p("    s_memtime s[66:67]")
        p("    s_waitcnt lgkmcnt(0)")
    p("L_%s_loop:" % name)
    p("    s_waitcnt vmcnt(%d)" % ((NS - 2) * DPS))
    p("    s_barrier")
    dma(True)
    if dbg != 2:
        reads(0, 0)
    for kk in range(2 if dbg != 2 else 0):
        st = kk & 1
        if kk < 1:
            reads(kk + 1, st ^ 1)
            p("    s_waitcnt lgkmcnt(%d)" % NRD)
        else:
            p("    s_waitcnt lgkmcnt(0)")
        for s in range(2):
            for t in range(RT):
                p("    v_mfma_f32_32x32x16_bf16 %s, %s, %s, %s" % (vr(acc[s][t], 16), vr(Wf(st, s), 4), vr(Xf(st, t), 4), vr(acc[s][t], 16)))
    p("    s_add_u32 s59, s59, 1")
    p("    s_cmp_eq_u32 s59, %d" % NS)
    p("    s_cselect_b32 s48, s60, s61")
    p("    s_cselect_b32 s59, 0, s59")
    for kk in range(2):
        p("    v_add_u32 %s, s48, %s" % (vr(vXa[kk]), vr(vXa[kk])))
    p("    v_add_u32 %s, s48, %s" % (vr(vWa), vr(vWa)))
    p("    s_add_u32 s49, s49, 1")
    p("    s_cmp_lt_u32 s49, %d" % NK)
    p("    s_cbranch_scc1 L_%s_loop" % name)
    p("    s_waitcnt vmcnt(0)")
    if prof:
        p("    s_memtime s[68:69]")
        p("    s_waitcnt lgkmcnt(0)")
    p("    s_barrier")
    p("    v_lshlrev_b32 %s, 2, %s" % (vr(vt0), vr(vlane)))
    p("    s_mul_i32 s3, s62, %d" % (32 * RT * 256))
    p("    v_add_u32 %s, s3, %s" % (vr(vt0), vr(vt0)))
    p("    s_cmp_eq_u32 s63, 0")
    p("    s_cbranch_scc1 L_%s_g0" % name)
    for s_ in range(2):
        for t in range(RT):
            for r in range(16):
                p("    ds_write_b32 %s, %s offset:%d" % (vr(vt0), vr(acc[s_][t] + r), ((s_ * RT + t) * 16 + r) * 256))
    p("    s_waitcnt lgkmcnt(0)")
    p("    s_barrier")
    p("    s_endpgm")
    p("L_%s_g0:" % name)
    p("    s_barrier")
    for s_ in range(2):
        for t in range(RT):
            for r4 in range(4):
                for r in range(4):
                    p("    ds_read_b32 %s, %s offset:%d" % (vr(fr[0] + r), vr(vt0), ((s_ * RT + t) * 16 + 4 * r4 + r) * 256))
                p("    s_waitcnt lgkmcnt(0)")
                p("    v_pk_add_f32 %s, %s, %s" % (vr(acc[s_][t] + 4 * r4, 2), vr(acc[s_][t] + 4 * r4, 2), vr(fr[0], 2)))
                p("    v_pk_add_f32 %s, %s, %s" % (vr(acc[s_][t] + 4 * r4 + 2, 2), vr(acc[s_][t] + 4 * r4 + 2, 2), vr(fr[0] + 2, 2)))

    vRow = vt0
    p("    s_mul_i32 s3, s28, %d" % BM)
    p("    s_mul_i32 s50, s38, %d" % (32 * RT))
    p("    s_add_u32 s3, s3, s50")
    p("    v_add_u32 %s, s3, %s" % (vr(vRow), vr(vL31)))
    p("    s_mov_b32 s51, 0xffff0000")

    def ln_correct(csbufs, scale=None):
        CS = fr[0] if 2 * FS >= 32 else v(32, 4)
        idx = 0
        for s_ in range(2):
            wsn, colbase_shift, colbase_add = csbufs[s_]
            oC, nC = WS[wsn]
            emit_srd(p, 24, 6, oC, nC)
            p("    s_lshl_b32 s3, s29, %d" % colbase_shift)
            p("    s_lshl_b32 s50, s37, 7")
            p("    s_add_u32 s3, s3, s50")
            if colbase_add:
                p("    s_add_u32 s3, s3, %d" % colbase_add)
            p("    v_lshlrev_b32 %s, 4, %s" % (vr(vt2), vr(vH)))
            p("    v_add_u32 %s, s3, %s" % (vr(vt2), vr(vt2)))
            for i in range(4):
                p("    buffer_load_dwordx4 %s, %s, s[24:27], 0 offen offset:%d" % (vr(CS + idx, 4), vr(vt2), 32 * i))
                idx += 4
        p("    s_waitcnt vmcnt(0)")
        if scale is not None:
            p("    s_mov_b32 s54, %s" % f32hex(scale))
            for t in range(RT):
                p("    v_mul_f32 %s, s54, %s" % (vr(vRs[t]), vr(vRs[t])))
                p("    v_mul_f32 %s, s54, %s" % (vr(vRs[t] + 1), vr(vRs[t] + 1)))
        for s_ in range(2):
            for t in range(RT):
                for i in range(4):
                    a = acc[s_][t] + 4 * i
                    c = CS + 16 * s_ + 4 * i
                    p("    v_pk_fma_f32 %s, %s, %s, %s" % (vr(a, 2), vr(c, 2), vr(vNegM[t], 2), vr(a, 2)))
                    p("    v_pk_fma_f32 %s, %s, %s, %s" % (vr(a + 2, 2), vr(c + 2, 2), vr(vNegM[t], 2), vr(a + 2, 2)))
                    p("    v_pk_mul_f32 %s, %s, %s" % (vr(a, 2), vr(a, 2), vr(vRs[t], 2)))
                    p("    v_pk_mul_f32 %s, %s, %s" % (vr(a + 2, 2), vr(a + 2, 2), vr(vRs[t], 2)))

    if epi == "resid":
        kO, _, oO, nO = buf(out)
        kR, _, oR, nR = buf(resid)
        emit_srd(p, 20, 44 if kO == "arg" else 6, oO, nO)
        emit_srd(p, 24, 46 if kR == "arg" else 6, oR, nR)
        vOff = vt1
        p("    v_mul_u32_u24 %s, 0x500, %s" % (vr(vOff), vr(vRow)))
        p("    s_lshl_b32 s3, s29, 8")
        p("    s_lshl_b32 s50, s37, 6")
        p("    s_add_u32 s3, s3, s50")
        p("    v_add_u32 %s, s3, %s" % (vr(vOff), vr(vOff)))
        p("    v_lshl_add_u32 %s, %s, 3, %s" % (vr(vOff), vr(vH), vr(vOff)))
        p("    s_mov_b32 s52, 0x%x" % (32 * 1280))
        R = fr[0]
        assert fr[1] == fr[0] + FS
        nneed = 2 * RT * 4 * 2
        assert 2 * FS >= nneed or True
        idx = 0
        regs = {}
        if 2 * FS < nneed:
            R = v(nneed, 4)
        for s in range(2):
            for t in range(RT):
                for i in range(4):
                    regs[(s, t, i)] = R + idx
                    so = "s52" if t else "0"
                    p("    buffer_load_dwordx2 %s, %s, s[24:27], %s offen offset:%d" % (vr(R + idx, 2), vr(vOff), so, 128 * s + 16 * i))
                    idx += 2
        tA = v(2, 2); tB = v(2, 2); tC = v(2, 2)
        vOnes = v(); vSt = [v(2, 2) for _ in range(RT)]
        p("    v_mov_b32 %s, 0x3f803f80" % vr(vOnes))
        for t in range(RT):
            p("    v_mov_b32 %s, 0" % vr(vSt[t])); p("    v_mov_b32 %s, 0" % vr(vSt[t] + 1))
        first = True
        for s in range(2):
            for t in range(RT):
                for i in range(4):
                    a = acc[s][t] + 4 * i
                    r0 = regs[(s, t, i)]
                    p("    v_cvt_pk_bf16_f32 %s, %s, %s" % (vr(tA), vr(a), vr(a + 1)))
                    p("    v_cvt_pk_bf16_f32 %s, %s, %s" % (vr(tA + 1), vr(a + 2), vr(a + 3)))
                    p("    v_lshlrev_b32 %s, 16, %s" % (vr(a), vr(tA)))
                    p("    v_and_b32 %s, s51, %s" % (vr(a + 1), vr(tA)))
                    p("    v_lshlrev_b32 %s, 16, %s" % (vr(a + 2), vr(tA + 1)))
                    p("    v_and_b32 %s, s51, %s" % (vr(a + 3), vr(tA + 1)))
                    if first:
                        p("    s_waitcnt vmcnt(0)")
                        first = False
                    p("    v_lshlrev_b32 %s, 16, %s" % (vr(tB), vr(r0)))
                    p("    v_and_b32 %s, s51, %s" % (vr(tB + 1), vr(r0)))
                    p("    v_lshlrev_b32 %s, 16, %s" % (vr(tC), vr(r0 + 1)))
                    p("    v_and_b32 %s, s51, %s" % (vr(tC + 1), vr(r0 + 1)))
                    p("    v_pk_add_f32 %s, %s, %s" % (vr(a, 2), vr(a, 2), vr(tB, 2)))
                    p("    v_pk_add_f32 %s, %s, %s" % (vr(a + 2, 2), vr(a + 2, 2), vr(tC, 2)))
                    p("    v_cvt_pk_bf16_f32 %s, %s, %s" % (vr(r0), vr(a), vr(a + 1)))
                    p("    v_cvt_pk_bf16_f32 %s, %s, %s" % (vr(r0 + 1), vr(a + 2), vr(a + 3)))
                    so = "s52" if t else "0"
                    p("    buffer_store_dwordx2 %s, %s, s[20:23], %s offen offset:%d" % (vr(r0, 2), vr(vOff), so, 128 * s + 16 * i))
                    for q in range(2):
                        p("    v_dot2c_f32_bf16 %s, %s, %s" % (vr(vSt[t]), vr(r0 + q), vr(vOnes)))
                        p("    v_dot2c_f32_bf16 %s, %s, %s" % (vr(vSt[t] + 1), vr(r0 + q), vr(r0 + q)))
        if out != "out":
            oSt, nSt = WS["stats"]
            emit_srd(p, 24, 6, oSt, nSt)
            p("    v_mul_u32_u24 %s, 160, %s" % (vr(vOff), vr(vRow)))
            p("    s_lshl_b32 s3, s29, 5")
            p("    s_lshl_b32 s50, s37, 4")
            p("    s_add_u32 s3, s3, s50")
            p("    v_add_u32 %s, s3, %s" % (vr(vOff), vr(vOff)))
            p("    v_lshl_add_u32 %s, %s, 3, %s" % (vr(vOff), vr(vH), vr(vOff)))
            p("    s_mov_b32 s52, %d" % (32 * 160))
            for t in range(RT):
                p("    buffer_store_dwordx2 %s, %s, s[24:27], %s offen" % (vr(vSt[t], 2), vr(vOff), "s52" if t else "0"))
    elif epi == "geglu":
        if ln:
            ln_correct([("csg", 8, 0), ("csu", 8, 0)])
        oH, nH = WS["h"]
        emit_srd(p, 20, 6, oH, nH)
        vOff = vt1
        p("    v_mul_u32_u24 %s, %d, %s" % (vr(vOff), DF * 2, vr(vRow)))
        p("    s_lshl_b32 s3, s29, 7")
        p("    s_lshl_b32 s50, s37, 6")
        p("    s_add_u32 s3, s3, s50")
        p("    v_add_u32 %s, s3, %s" % (vr(vOff), vr(vOff)))
        p("    v_lshl_add_u32 %s, %s, 3, %s" % (vr(vOff), vr(vH), vr(vOff)))
        p("    s_mov_b32 s52, 0x%x" % (32 * DF * 2))
        k1 = -2.0 * math.sqrt(2.0 / math.pi) * 1.4426950408889634
        k2 = k1 * 0.044715
        p("    s_mov_b32 s54, %s" % f32hex(k2)); p("    s_mov_b32 s55, %s" % f32hex(k2))
        tA = v(2, 2); tB = v(2, 2); tW = v(2, 2); tK1 = v(2, 2)
        p("    v_mov_b32 %s, %s" % (vr(tK1), f32hex(k1))); p("    v_mov_b32 %s, %s" % (vr(tK1 + 1), f32hex(k1)))
        for t in range(RT):
            for i in range(4):
                g = acc[0][t] + 4 * i
                u = acc[1][t] + 4 * i
                p("    v_cvt_pk_bf16_f32 %s, %s, %s" % (vr(tA), vr(g), vr(g + 1)))
                p("    v_cvt_pk_bf16_f32 %s, %s, %s" % (vr(tA + 1), vr(g + 2), vr(g + 3)))
                p("    v_cvt_pk_bf16_f32 %s, %s, %s" % (vr(tB), vr(u), vr(u + 1)))
                p("    v_cvt_pk_bf16_f32 %s, %s, %s" % (vr(tB + 1), vr(u + 2), vr(u + 3)))
                p("    v_lshlrev_b32 %s, 16, %s" % (vr(g), vr(tA)))
                p("    v_and_b32 %s, s51, %s" % (vr(g + 1), vr(tA)))
                p("    v_lshlrev_b32 %s, 16, %s" % (vr(g + 2), vr(tA + 1)))
                p("    v_and_b32 %s, s51, %s" % (vr(g + 3), vr(tA + 1)))
                p("    v_lshlrev_b32 %s, 16, %s" % (vr(u), vr(tB)))
                p("    v_and_b32 %s, s51, %s" % (vr(u + 1), vr(tB)))
                p("    v_lshlrev_b32 %s, 16, %s" % (vr(u + 2), vr(tB + 1)))
                p("    v_and_b32 %s, s51, %s" % (vr(u + 3), vr(tB + 1)))
                for hh in range(2):
                    gg = g + 2 * hh
                    p("    v_pk_mul_f32 %s, %s, %s" % (vr(tW, 2), vr(gg, 2), vr(gg, 2)))
                    p("    v_pk_fma_f32 %s, %s, s[54:55], %s" % (vr(tW, 2), vr(tW, 2), vr(tK1, 2)))
                    p("    v_pk_mul_f32 %s, %s, %s" % (vr(tW, 2), vr(tW, 2), vr(gg, 2)))
                    p("    v_exp_f32 %s, %s" % (vr(tW), vr(tW)))
                    p("    v_exp_f32 %s, %s" % (vr(tW + 1), vr(tW + 1)))
                    p("    v_add_f32 %s, 1.0, %s" % (vr(tW), vr(tW)))
                    p("    v_add_f32 %s, 1.0, %s" % (vr(tW + 1), vr(tW + 1)))
                    p("    v_rcp_f32 %s, %s" % (vr(tW), vr(tW)))
                    p("    v_rcp_f32 %s, %s" % (vr(tW + 1), vr(tW + 1)))
                    p("    v_pk_mul_f32 %s, %s, %s" % (vr(gg, 2), vr(gg, 2), vr(tW, 2)))
                p("    v_cvt_pk_bf16_f32 %s, %s, %s" % (vr(tA), vr(g), vr(g + 1)))
                p("    v_cvt_pk_bf16_f32 %s, %s, %s" % (vr(tA + 1), vr(g + 2), vr(g + 3)))
                p("    v_lshlrev_b32 %s, 16, %s" % (vr(g), vr(tA)))
                p("    v_and_b32 %s, s51, %s" % (vr(g + 1), vr(tA)))
                p("    v_lshlrev_b32 %s, 16, %s" % (vr(g + 2), vr(tA + 1)))
                p("    v_and_b32 %s, s51, %s" % (vr(g + 3), vr(tA + 1)))
                p("    v_pk_mul_f32 %s, %s, %s" % (vr(g, 2), vr(g, 2), vr(u, 2)))
                p("    v_pk_mul_f32 %s, %s, %s" % (vr(g + 2, 2), vr(g + 2, 2), vr(u + 2, 2)))
                p("    v_cvt_pk_bf16_f32 %s, %s, %s" % (vr(u), vr(g), vr(g + 1)))
                p("    v_cvt_pk_bf16_f32 %s, %s, %s" % (vr(u + 1), vr(g + 2), vr(g + 3)))
                so = "s52" if t else "0"
                p("    buffer_store_dwordx2 %s, %s, s[20:23], %s offen offset:%d" % (vr(u, 2), vr(vOff), so, 16 * i))
    elif epi == "qkv":
        oQ, nQ = WS["q"]
        oK, nK = WS["kext"]
        oV, nV = WS["vt"]
        if ln:
            ln_correct([("csq", 9, 0), ("csq", 9, 256)])
        p("    s_cmp_ge_u32 s29, 5")
        p("    s_cbranch_scc1 L_%s_kv" % name)
        emit_srd(p, 20, 6, oQ, nQ)
        vOff = vt1
        p("    v_mul_u32_u24 %s, 0x500, %s" % (vr(vOff), vr(vRow)))
        p("    s_lshl_b32 s3, s29, 8")
        p("    s_lshl_b32 s50, s37, 6")
        p("    s_add_u32 s3, s3, s50")
        p("    v_add_u32 %s, s3, %s" % (vr(vOff), vr(vOff)))
        p("    v_lshl_add_u32 %s, %s, 3, %s" % (vr(vOff), vr(vH), vr(vOff)))
        p("    s_mov_b32 s52, 0x%x" % (32 * 1280))
        p("    s_mov_b32 s54, %s" % f32hex(CSCALE)); p("    s_mov_b32 s55, %s" % f32hex(CSCALE))
        for s in range(2):
            for t in range(RT):
                for i in range(4):
                    a = acc[s][t] + 4 * i
                    p("    v_pk_mul_f32 %s, %s, s[54:55]" % (vr(a, 2), vr(a, 2)))
                    p("    v_pk_mul_f32 %s, %s, s[54:55]" % (vr(a + 2, 2), vr(a + 2, 2)))
                    p("    v_cvt_pk_bf16_f32 %s, %s, %s" % (vr(a), vr(a), vr(a + 1)))
                    p("    v_cvt_pk_bf16_f32 %s, %s, %s" % (vr(a + 1), vr(a + 2), vr(a + 3)))
                    so = "s52" if t else "0"
                    p("    buffer_store_dwordx2 %s, %s, s[20:23], %s offen offset:%d" % (vr(a, 2), vr(vOff), so, 128 * s + 16 * i))
        p("    s_endpgm")
        p("L_%s_kv:" % name)
        p("    s_cmp_lg_u32 s37, 0")
        p("    s_cbranch_scc1 L_%s_end" % name)
        emit_srd(p, 20, 6, oK, nK)
        emit_srd(p, 24, 6, oV, nV)
        p("    s_mov_b32 s56, 0")
        p("    s_mov_b32 s57, -1")
        p("    v_mov_b32 %s, 0" % vr(vt3))
        vOne = v()
        p("    v_mov_b32 %s, 0x3f80" % vr(vOne))
        for t in range(RT):
            vOff = vt1
            p("    v_add_u32 %s, %d, %s" % (vr(vOff), 32 * t, vr(vRow)))
            p("    v_lshlrev_b32 %s, 6, %s" % (vr(vOff), vr(vOff)))
            p("    v_lshl_add_u32 %s, %s, 3, %s" % (vr(vOff), vr(vH), vr(vOff)))
            a = acc[0][t]
            for i in range(3):
                p("    v_cvt_pk_bf16_f32 %s, %s, %s" % (vr(a + 4 * i), vr(a + 4 * i), vr(a + 4 * i + 1)))
                p("    v_cvt_pk_bf16_f32 %s, %s, %s" % (vr(a + 4 * i + 1), vr(a + 4 * i + 2), vr(a + 4 * i + 3)))
            p("    v_cndmask_b32 %s, %s, %s, s[56:57]" % (vr(a + 8), vr(a + 8), vr(vOne)))
            p("    v_cndmask_b32 %s, %s, %s, s[56:57]" % (vr(a + 9), vr(a + 9), vr(vt3)))
            p("    v_mov_b32 %s, 0" % vr(a + 12)); p("    v_mov_b32 %s, 0" % vr(a + 13))
            for i in range(4):
                p("    buffer_store_dwordx2 %s, %s, s[20:23], 0 offen offset:%d" % (vr(a + 4 * i, 2), vr(vOff), 16 * i))
            vV = vt2
            p("    v_add_u32 %s, %d, %s" % (vr(vOff), 32 * t, vr(vRow)))
            p("    v_lshrrev_b32 %s, 5, %s" % (vr(vV), vr(vOff)))
            p("    v_lshlrev_b32 %s, 11, %s" % (vr(vV), vr(vV)))
            vp = v.next
            tA = v(2, 2)
            p("    v_and_b32 %s, 0x13, %s" % (vr(tA), vr(vOff)))
            p("    v_bfe_u32 %s, %s, 2, 1" % (vr(tA + 1), vr(vOff)))
            p("    v_lshl_add_u32 %s, %s, 3, %s" % (vr(tA), vr(tA + 1), vr(tA)))
            p("    v_bfe_u32 %s, %s, 3, 1" % (vr(tA + 1), vr(vOff)))
            p("    v_lshl_add_u32 %s, %s, 2, %s" % (vr(tA), vr(tA + 1), vr(tA)))
            p("    v_lshl_add_u32 %s, %s, 1, %s" % (vr(vV), vr(tA), vr(vV)))
            p("    v_lshl_add_u32 %s, %s, 8, %s" % (vr(vV), vr(vH), vr(vV)))
            b = acc[1][t]
            for i in range(3):
                p("    v_cvt_pk_bf16_f32 %s, %s, %s" % (vr(b + 4 * i), vr(b + 4 * i), vr(b + 4 * i + 1)))
                p("    v_cvt_pk_bf16_f32 %s, %s, %s" % (vr(b + 4 * i + 1), vr(b + 4 * i + 2), vr(b + 4 * i + 3)))
            p("    v_cndmask_b32 %s, %s, %s, s[56:57]" % (vr(b + 8), vr(b + 8), vr(vOne)))
            p("    v_cndmask_b32 %s, %s, %s, s[56:57]" % (vr(b + 9), vr(b + 9), vr(vt3)))
            p("    v_mov_b32 %s, 0" % vr(b + 12)); p("    v_mov_b32 %s, 0" % vr(b + 13))
            for i in range(4):
                for jj in range(2):
                    reg = b + 4 * i + jj
                    p("    buffer_store_short %s, %s, s[24:27], 0 offen offset:%d" % (vr(reg), vr(vV), (8 * i + 2 * jj) * 64))
                    p("    buffer_store_short_d16_hi %s, %s, s[24:27], 0 offen offset:%d" % (vr(reg), vr(vV), (8 * i + 2 * jj + 1) * 64))
            v.next = vp
    if prof:
        p("    s_waitcnt vmcnt(0)")
        p("    s_memtime s[70:71]")
        p("    s_waitcnt lgkmcnt(0)")
        oP, nP = WS["prof"]
        emit_srd(p, 72, 6, oP, nP)
        p("    s_lshl_b32 s3, s2, 5")
        for i in range(8):
            p("    v_mov_b32 v%d, s%d" % (i + 4, 64 + i))
        p("    v_mov_b32 v3, s3")
        p("    buffer_store_dwordx4 v[4:7], v3, s[72:75], 0 offen")
        p("    buffer_store_dwordx4 v[8:11], v3, s[72:75], 0 offen offset:16")
    p("L_%s_end:" % name)
    p("    s_endpgm")
    return Kernel(name, (T, 1, 1), (512, 1, 1), max(LDS, 4 * 32 * RT * 256), p.lines)
```
